```python
import torch

def _softmax(x, axis=-1):
    return torch.softmax(x, dim=axis)

def _gelu(x):
    return torch.nn.functional.gelu(x, approximate='tanh')

def _silu(x):
    return torch.nn.functional.silu(x)

def _sigmoid(x):
    return torch.sigmoid(x)

def _layernorm(x, axis=-1, eps=1e-05):
    m = x.mean(dim=axis, keepdim=True)
    v = x.var(dim=axis, keepdim=True, unbiased=False)
    return (x - m) / torch.sqrt(v + eps)

def _scatter_add(tgt, idx, src, axis=0):
    return tgt.clone().index_add_(axis, idx, src)

def _segment_sum(src, seg, n):
    out = torch.zeros((n,) + src.shape[1:], dtype=src.dtype)
    return out.index_add_(0, seg, src)

def _pad(x, pw):
    flat = tuple((v for pair in reversed(pw) for v in pair))
    return torch.nn.functional.pad(x, flat)
kernel_name = 'standalone__mm_dit__diffusion'

def setup_inputs():

    _w = lambda a: (lambda t: t.to(torch.bfloat16) if t.is_floating_point() else t)(torch.as_tensor(a))
    B, Ni, Nt, D = (2, 1024, 32, 768)
    return {'x_img': _w((lambda *s: torch.randn(*s, dtype=torch.bfloat16) * 0.05)(B, Ni, D)), 'x_txt': _w((lambda *s: torch.randn(*s, dtype=torch.bfloat16) * 0.05)(B, Nt, D)), 'c': _w((lambda *s: torch.randn(*s, dtype=torch.bfloat16) * 0.05)(B, D)), 'wqkv_img': _w((lambda *s: torch.randn(*s, dtype=torch.bfloat16) * 0.05)(D, 3 * D)), 'wqkv_txt': _w((lambda *s: torch.randn(*s, dtype=torch.bfloat16) * 0.05)(D, 3 * D)), 'wo_img': _w((lambda *s: torch.randn(*s, dtype=torch.bfloat16) * 0.05)(D, D)), 'wo_txt': _w((lambda *s: torch.randn(*s, dtype=torch.bfloat16) * 0.05)(D, D)), 'wmod_img': _w((lambda *s: torch.randn(*s, dtype=torch.bfloat16) * 0.05)(D, 6 * D)), 'wmod_txt': _w((lambda *s: torch.randn(*s, dtype=torch.bfloat16) * 0.05)(D, 6 * D))}

def reference(x_img, x_txt, c, wqkv_img, wqkv_txt, wo_img, wo_txt, wmod_img, wmod_txt):
    B, Ni, D = x_img.shape
    Nt = x_txt.shape[1]
    mod_i = (_silu(c) @ wmod_img).reshape(B, 6, 1, D)
    mod_t = (_silu(c) @ wmod_txt).reshape(B, 6, 1, D)
    shi, sci, gai = (mod_i[:, 0].clone(), mod_i[:, 1].clone(), mod_i[:, 2].clone())
    sht, sct, gat = (mod_t[:, 0].clone(), mod_t[:, 1].clone(), mod_t[:, 2].clone())
    hi = _layernorm(x_img, axis=-1) * (1 + sci) + shi
    ht = _layernorm(x_txt, axis=-1) * (1 + sct) + sht
    qkvi = hi @ wqkv_img
    qkvt = ht @ wqkv_txt
    qi, ki, vi = (qkvi[..., :D].clone(), qkvi[..., D:2 * D].clone(), qkvi[..., 2 * D:].clone())
    qt, kt, vt = (qkvt[..., :D].clone(), qkvt[..., D:2 * D].clone(), qkvt[..., 2 * D:].clone())
    q = torch.concatenate([qt, qi], axis=1)
    k = torch.concatenate([kt, ki], axis=1)
    v = torch.concatenate([vt, vi], axis=1)
    scores = torch.einsum('bqd,bkd->bqk', q, k) * D ** (-0.5)
    p = _softmax(scores, axis=-1)
    a = torch.einsum('bqk,bkd->bqd', p, v)
    at, ai = (a[:, :Nt].clone(), a[:, Nt:].clone())
    out_i = x_img + gai * (ai @ wo_img)
    out_t = x_txt + gat * (at @ wo_txt)
    return (out_i, out_t)
```

```python
B, NI, NT_, D = 2, 1024, 32, 768
NTOK = NI + NT_
KA_XIMG, KA_XTXT, KA_C, KA_WQKV_I, KA_WQKV_T, KA_WO_I, KA_WO_T, KA_WMOD_I, KA_WMOD_T, KA_OUT, KA_DBG, KA_WS = [8*i for i in range(12)]
WS_MODP   = 0x0
WS_STATS  = 0x20000
WS_QKV    = 0x100000
WS_P      = 0x1000000
WS_PSTAT  = 0x1800000
WS_VT     = 0x1900000
WS_VT2    = 0x1d00000
WS_SIZE   = 268435456

class Asm:
    def __init__(self):
        self.lines = []
        self.uid = 0
    def __call__(self, s):
        for ln in s.strip("\n").split("\n"):
            self.lines.append("  " + ln.strip() if not ln.strip().endswith(":") else ln.strip())
    def label(self, name):
        self.lines.append(name + ":")
    def newlabel(self, p="L"):
        self.uid += 1
        return f"{p}_{self.uid}"
    def text(self):
        return "\n".join(self.lines) + "\n"

def srd(a, sreg, sptr, nbytes):
    a(f"s_mov_b32 s{sreg}, s{sptr}")
    a(f"s_mov_b32 s{sreg+1}, s{sptr+1}")
    a(f"s_mov_b32 s{sreg+2}, {nbytes}")
    a(f"s_mov_b32 s{sreg+3}, 0x00020000")

def kernel_header(name):
    return f""".globl {name}
.p2align 8
.type {name},@function
{name}:
"""

def kernel_desc(name, vgpr, sgpr=102, accum=None):
    if accum is None:
        accum = (vgpr + 3) // 4 * 4
    return f""".p2align 6
.amdhsa_kernel {name}
  .amdhsa_next_free_vgpr {vgpr}
  .amdhsa_next_free_sgpr {sgpr}
  .amdhsa_accum_offset {accum}
  .amdhsa_group_segment_fixed_size 0
  .amdhsa_kernarg_size 96
  .amdhsa_user_sgpr_count 2
  .amdhsa_user_sgpr_kernarg_segment_ptr 1
  .amdhsa_system_sgpr_workgroup_id_x 1
.end_amdhsa_kernel
"""

def wave_sum(a, v, tmp):
    a(f"s_nop 1")
    a(f"v_add_f32_dpp v{v}, v{v}, v{v} quad_perm:[1,0,3,2] row_mask:0xf bank_mask:0xf")
    a(f"s_nop 1")
    a(f"v_add_f32_dpp v{v}, v{v}, v{v} quad_perm:[2,3,0,1] row_mask:0xf bank_mask:0xf")
    a(f"s_nop 1")
    a(f"v_add_f32_dpp v{v}, v{v}, v{v} row_half_mirror row_mask:0xf bank_mask:0xf")
    a(f"s_nop 1")
    a(f"v_add_f32_dpp v{v}, v{v}, v{v} row_mirror row_mask:0xf bank_mask:0xf")
    a(f"v_mov_b32 v{tmp}, v{v}")
    a(f"s_nop 1")
    a(f"v_permlane16_swap_b32 v{v}, v{tmp}")
    a(f"s_nop 1")
    a(f"v_add_f32 v{v}, v{v}, v{tmp}")
    a(f"v_mov_b32 v{tmp}, v{v}")
    a(f"s_nop 1")
    a(f"v_permlane32_swap_b32 v{v}, v{tmp}")
    a(f"s_nop 1")
    a(f"v_add_f32 v{v}, v{v}, v{tmp}")

def srd_off(a, sreg, sptr, off, nbytes):
    a(f"s_add_u32 s{sreg}, s{sptr}, {off}")
    a(f"s_addc_u32 s{sreg+1}, s{sptr+1}, 0")
    a(f"s_mov_b32 s{sreg+2}, {nbytes}")
    a(f"s_mov_b32 s{sreg+3}, 0x00020000")
import struct
def f32bits(x):
    return struct.unpack('<I', struct.pack('<f', x))[0]
```

```python
from common import *
import struct
def f32bits(x):
    return struct.unpack('<I', struct.pack('<f', x))[0]


K1_NMOD = 216
K1_NSTAT = 264
K1_GRID = K1_NMOD + K1_NSTAT
K1_LDS = 2048 + 8192

def gen_k1():
    a = Asm()
    a(f"""
    s_cmp_ge_u32 s2, {K1_GRID}
    s_cbranch_scc1 K1_end
    s_load_dwordx4 s[4:7], s[0:1], {KA_XIMG}
    s_load_dwordx2 s[8:9], s[0:1], {KA_C}
    s_load_dwordx4 s[12:15], s[0:1], {KA_WMOD_I}
    s_load_dwordx2 s[10:11], s[0:1], {KA_WS}
    v_and_b32 v1, 63, v0                          ; lane
    v_lshrrev_b32 v2, 6, v0                       ; wave
    s_waitcnt lgkmcnt(0)
    """)
    srd(a, 16, 10, WS_SIZE)
    a(f"""
    s_cmp_ge_u32 s2, {K1_NMOD}
    s_cbranch_scc1 K1_stats
    s_mov_b32 s20, 0
    s_mov_b32 s21, s2
    s_cmp_ge_u32 s21, 72
    s_cbranch_scc0 K1_m1
    s_sub_u32 s21, s21, 72
    s_add_u32 s20, s20, 1
    s_cmp_ge_u32 s21, 72
    s_cbranch_scc0 K1_m1
    s_sub_u32 s21, s21, 72
    s_add_u32 s20, s20, 1
    K1_m1:
    s_cmp_ge_u32 s21, 36
    s_cselect_b32 s24, s14, s12
    s_cselect_b32 s25, s15, s13
    s_cselect_b32 s22, 36, 0
    s_sub_u32 s22, s21, s22
    s_mov_b32 s26, {768*9216}
    s_mov_b32 s27, 0x00020000
    """)
    srd(a, 28, 8, 2*768*2)
    a(f"""
    s_lshl_b32 s23, s20, 8
    v_add_u32 v3, s23, v0
    v_lshlrev_b32 v3, 1, v3
    buffer_load_ushort v4, v3, s[28:31], 0 offen
    buffer_load_ushort v5, v3, s[28:31], 0 offen offset:1536
    ; W loads
    v_and_b32 v6, 15, v1                          ; colq
    v_lshrrev_b32 v7, 4, v1                       ; rsub
    v_lshl_add_u32 v8, v2, 6, v7
    s_movk_i32 s32, 9216
    v_mul_lo_u32 v9, v8, s32
    v_lshl_add_u32 v9, v6, 3, v9                  ; + colq*8
    s_lshl_b32 s33, s22, 7
    v_add_u32 v9, s33, v9
    s_mul_i32 s34, s20, {256*9216}
    """)
    for p in range(16):
        a(f"buffer_load_dwordx2 v[{32+2*p}:{33+2*p}], v9, s[24:27], s34 offen")
        if p < 15:
            a(f"s_add_u32 s34, s34, {4*9216}")
    a(f"""
    s_waitcnt vmcnt(16)
    """)
    for v in (4, 5):
        a(f"""
        v_lshlrev_b32 v{v}, 16, v{v}
        v_mul_f32 v10, 0xbfb8aa3b, v{v}           ; -x*log2e
        v_exp_f32 v10, v10
        s_nop 0
        v_add_f32 v10, 1.0, v10
        v_rcp_f32 v10, v10
        s_nop 0
        v_mul_f32 v{v}, v{v}, v10
        """)
    a(f"""
    v_cvt_pk_bf16_f32 v10, v4, v5
    v_lshlrev_b32 v4, 16, v10
    v_and_b32 v5, 0xffff0000, v10
    v_lshlrev_b32 v11, 3, v0
    ds_write_b64 v11, v[4:5]
    s_waitcnt lgkmcnt(0)
    s_barrier
    v_lshlrev_b32 v11, 3, v8
    """)
    for p in range(16):
        a(f"ds_read_b64 v[{64+2*p}:{65+2*p}], v11 offset:{32*p}")
    for i in range(8):
        a(f"v_mov_b32 v{16+i}, 0")
    for p in range(16):
        a(f"s_waitcnt vmcnt({15-p}) lgkmcnt({15-p})")
        w0, w1 = 32+2*p, 33+2*p
        c0, c1 = 64+2*p, 65+2*p
        a(f"""
        v_lshlrev_b32 v12, 16, v{w0}
        v_and_b32 v13, 0xffff0000, v{w0}
        v_lshlrev_b32 v14, 16, v{w1}
        v_and_b32 v15, 0xffff0000, v{w1}
        v_fmac_f32 v16, v12, v{c0}
        v_fmac_f32 v17, v13, v{c0}
        v_fmac_f32 v18, v14, v{c0}
        v_fmac_f32 v19, v15, v{c0}
        v_fmac_f32 v20, v12, v{c1}
        v_fmac_f32 v21, v13, v{c1}
        v_fmac_f32 v22, v14, v{c1}
        v_fmac_f32 v23, v15, v{c1}
        """)
    a(f"""
    v_lshl_add_u32 v11, v2, 2, v7                 ; w*4+rsub
    v_lshlrev_b32 v11, 9, v11                     ; *512
    v_lshl_add_u32 v11, v6, 5, v11                ; + colq*32
    ds_write_b128 v11, v[16:19] offset:2048
    ds_write_b128 v11, v[20:23] offset:2064
    s_waitcnt lgkmcnt(0)
    s_barrier
    v_cmp_gt_u32 vcc, 128, v0
    s_and_saveexec_b64 s[36:37], vcc
    s_cbranch_execz K1_end
    v_lshlrev_b32 v11, 2, v0
    """)
    for p in range(16):
        a(f"ds_read_b32 v{32+p}, v11 offset:{2048+512*p}")
    a("s_waitcnt lgkmcnt(0)")
    for st in (8, 4, 2, 1):
        for i in range(st):
            a(f"v_add_f32 v{32+i}, v{32+i}, v{32+i+st}")
    a(f"""
    v_lshrrev_b32 v12, 3, v0                      ; colq
    v_and_b32 v13, 3, v0                          ; c
    v_bfe_u32 v14, v0, 2, 1                       ; b
    v_lshl_add_u32 v12, v12, 2, v13               ; colq*4+c
    s_lshl_b32 s33, s21, 6
    v_add_u32 v12, s33, v12                       ; col 0..4607
    s_movk_i32 s32, 4608
    v_mad_u32_u24 v12, v14, s32, v12              ; b*4608 + col
    s_mul_i32 s33, s20, {2*4608}
    v_add_u32 v12, s33, v12
    v_lshlrev_b32 v12, 2, v12
    buffer_store_dword v32, v12, s[16:19], 0 offen offset:{WS_MODP}
    s_endpgm
    K1_stats:
    s_sub_u32 s20, s2, {K1_NMOD}
    s_lshl_b32 s20, s20, 3
    s_cmp_ge_u32 s20, 2048
    s_cselect_b32 s24, s6, s4
    s_cselect_b32 s25, s7, s5
    s_mov_b32 s33, {2048*1536}
    s_cselect_b32 s26, {64*1536}, s33
    s_cselect_b32 s21, 2048, 0
    s_mov_b32 s27, 0x00020000
    s_sub_u32 s21, s20, s21
    v_lshl_add_u32 v3, v2, 1, s21                 ; row0 = s21 + 2*w
    s_movk_i32 s32, 1536
    v_mul_lo_u32 v4, v3, s32
    v_mul_u32_u24 v5, 24, v1
    v_add_u32 v4, v4, v5
    buffer_load_dwordx3 v[8:10], v4, s[24:27], 0 offen
    buffer_load_dwordx3 v[12:14], v4, s[24:27], 0 offen offset:12
    buffer_load_dwordx3 v[16:18], v4, s[24:27], 0 offen offset:1536
    buffer_load_dwordx3 v[20:22], v4, s[24:27], 0 offen offset:1548
    """)
    for r in range(2):
        src = [8+8*r, 9+8*r, 10+8*r, 12+8*r, 13+8*r, 14+8*r]
        f = 32 + 16*r
        a(f"s_waitcnt vmcnt({2-2*r})")
        for i, sv in enumerate(src):
            a(f"v_lshlrev_b32 v{f+2*i}, 16, v{sv}")
            a(f"v_and_b32 v{f+2*i+1}, 0xffff0000, v{sv}")
        sm = 24 + 2*r
        a(f"v_add_f32 v{sm}, v{f}, v{f+1}")
        for i in range(2, 12):
            a(f"v_add_f32 v{sm}, v{sm}, v{f+i}")
        wave_sum(a, sm, 28)
        a(f"v_mul_f32 v{sm}, {hex(f32bits(1.0/768))}, v{sm}")
        for i in range(12):
            a(f"v_sub_f32 v{f+i}, v{f+i}, v{sm}")
        sq = 25 + 2*r
        a(f"v_mul_f32 v{sq}, v{f}, v{f}")
        for i in range(1, 12):
            a(f"v_fmac_f32 v{sq}, v{f+i}, v{f+i}")
        wave_sum(a, sq, 28)
        a(f"""
        v_mov_b32 v29, {hex(f32bits(1e-5))}
        v_fmac_f32 v29, {hex(f32bits(1.0/768))}, v{sq}
        v_rsq_f32 v{sq}, v29
        s_nop 0
        v_mul_f32 v{sm}, v{sm}, v{sq}
        v_sub_f32 v{sm}, 0, v{sm}
        """)
    a(f"""
    v_cmp_eq_u32 vcc, 1, v1
    s_nop 1
    v_cndmask_b32 v30, v25, v27, vcc
    v_cndmask_b32 v31, v24, v26, vcc
    v_lshl_add_u32 v3, v2, 1, s20
    v_add_u32 v3, v3, v1
    v_lshlrev_b32 v3, 3, v3
    v_cmp_gt_u32 vcc, 2, v1
    s_and_saveexec_b64 s[36:37], vcc
    s_mov_b32 s32, {WS_STATS}
    buffer_store_dwordx2 v[30:31], v3, s[16:19], s32 offen
    K1_end:
    s_endpgm
    """)
    return a
```

```python
from common import *

K2_GRID = 256
K2_NBUF = 7
K2_STG = 20480
K2_LDS_DUMMY = K2_NBUF * K2_STG
K2_LDS_MOD = K2_LDS_DUMMY + 1024
K2_LDS = K2_LDS_MOD + 12288
NSTG = 12
COLS0 = [0, 160, 304, 464, 608, 768, 928, 1072, 1232, 1376, 1536, 1696, 1840, 2000, 2144]

DBG = set()
NSTAMP = [0]
def stamp(a):
    if 'stamp' not in DBG: return
    i = NSTAMP[0]; NSTAMP[0] += 1
    a(f"s_memtime s[{66+2*i}:{67+2*i}]")
def stamp_out(a, VT):
    if 'stamp' not in DBG: return
    n = NSTAMP[0]
    a("s_waitcnt lgkmcnt(0)")
    a(f"s_lshl_b32 s3, s2, 3")
    a(f"s_add_u32 s3, s3, s40")
    a(f"s_lshl_b32 s3, s3, 6")
    a(f"s_add_u32 s3, s3, 0x40000")
    a(f"v_mov_b32 v{VT}, 0")
    for i in range(n):
        a(f"v_mov_b32 v{VT+1}, s{66+2*i}")
        a(f"buffer_store_dword v{VT+1}, v{VT}, s[24:27], s3 offen offset:{4*i}")
def gen_k2():
    a = Asm()
    NSTAMP[0] = 0
    stamp(a)
    ACC = 0
    BF = 80
    XR = 120
    AN = 184
    TMP = 192
    SCH = 196
    ST = 228
    VX = 230
    VD = 231
    VL = 234
    VM = 235
    VLANE = 236
    VL2 = 237
    VL3 = 238
    VT = 240
    ops = []
    def need(tags):
        last = max(i for i, t in enumerate(ops) if t in tags)
        return len(ops) - 1 - last
    a(f"""
    s_cmp_ge_u32 s2, {K2_GRID}
    s_cbranch_scc1 K2_end
    s_load_dwordx4 s[4:7], s[0:1], {KA_XIMG}
    s_load_dwordx4 s[8:11], s[0:1], {KA_WQKV_I}
    s_load_dwordx2 s[12:13], s[0:1], {KA_WS}
    v_and_b32 v{VLANE}, 63, v0
    v_lshrrev_b32 v{VT}, 6, v0
    v_mov_b32 v{VT+1}, v0
    s_nop 0
    v_readfirstlane_b32 s40, v{VT}
    s_and_b32 s3, s2, 7                            ; j
    s_lshr_b32 s14, s2, 3                          ; i
    s_lshr_b32 s15, s3, 1                          ; rowgroup
    s_and_b32 s3, s3, 1                            ; colgroup
    s_and_b32 s41, s40, 3                          ; rg
    s_lshr_b32 s42, s40, 2                         ; kh
    s_lshr_b32 s43, s14, 2                         ; i>>2
    s_lshl_b32 s3, s3, 3
    s_add_u32 s43, s43, s3
    s_and_b32 s44, s14, 3
    s_lshl_b32 s15, s15, 2
    s_add_u32 s44, s44, s15
    s_mov_b32 s45, 0                               ; is_txt
    s_cmp_eq_u32 s43, 15
    s_cbranch_scc0 K2_dec
    s_mov_b32 s45, 1
    s_mov_b32 s43, s44
    s_cmp_eq_u32 s43, 15
    s_cbranch_scc1 K2_end
    K2_dec:
    s_mul_i32 s46, s43, 48
    s_add_u32 s46, s46, 2
    s_mul_i32 s46, s46, 52429
    s_lshr_b32 s46, s46, 18
    s_lshl_b32 s46, s46, 4                         ; C0 (elements)
    s_waitcnt lgkmcnt(0)
    """)
    stamp(a)
    srd(a, 24, 12, WS_QKV)
    srd_off(a, 28, 12, WS_QKV, 2*1056*2304*2)
    a(f"""
    s_cmp_eq_u32 s45, 1
    s_cselect_b32 s16, s6, s4
    s_cselect_b32 s17, s7, s5
    s_mov_b32 s47, {2048*1536}
    s_cselect_b32 s18, {64*1536}, s47
    s_mov_b32 s19, 0x00020000
    s_cselect_b32 s20, s10, s8
    s_cselect_b32 s21, s11, s9
    s_mov_b32 s22, {768*4608}
    s_mov_b32 s23, 0x00020000
    s_cbranch_scc1 K2_txt
    s_lshl_b32 s48, s44, 7
    s_lshl_b32 s47, s41, 5
    s_add_u32 s48, s48, s47                        ; x row0
    s_mov_b32 s49, s48
    s_lshr_b32 s50, s44, 3                         ; batch
    s_mul_i32 s51, s50, 32
    s_add_u32 s51, s51, s48
    s_mov_b32 s52, 1                               ; valid
    s_mov_b32 s53, 0
    s_branch K2_dec2
    K2_txt:
    s_lshl_b32 s48, s41, 5
    s_add_u32 s49, s48, 2048
    s_and_b32 s50, s41, 1                          ; batch
    s_mul_i32 s51, s50, 1056
    s_add_u32 s51, s51, 1024
    s_cmp_lt_u32 s41, 2
    s_cselect_b32 s52, 1, 0
    s_movk_i32 s53, 2304
    K2_dec2:
    """)
    a(f"""
    s_mul_i32 s54, s40, 192                        ; 3*wave*64
    s_lshl_b32 s55, s46, 1                         ; C0*2 bytes
    """)
    for i in range(3):
        a(f"""
        v_add_u32 v{VT+2}, s54, v{VLANE}
        v_add_u32 v{VT+2}, {64*i}, v{VT+2}           ; idx
        v_mul_u32_u24 v{VT+3}, 3277, v{VT+2}
        v_lshrrev_b32 v{VT+3}, 16, v{VT+3}           ; row
        v_mul_u32_u24 v{VT+4}, 20, v{VT+3}
        v_sub_u32 v{VT+4}, v{VT+2}, v{VT+4}          ; slot
        v_mul_u32_u24 v{VT+3}, 4608, v{VT+3}
        v_lshl_add_u32 v{VT+3}, v{VT+4}, 4, v{VT+3}
        v_add_u32 v{VT+3}, s55, v{VT+3}
        v_cmp_gt_u32 vcc, 1280, v{VT+2}
        v_mov_b32 v{VT+4}, 0x7fffffff
        s_nop 0
        v_cndmask_b32 v{VD+i}, v{VT+4}, v{VT+3}, vcc
        """)
    for i in range(3):
        a(f"""
        s_mul_i32 s{56+i}, s40, 3
        s_add_u32 s{56+i}, s{56+i}, {i}
        s_cmp_lt_u32 s{56+i}, 20
        s_cselect_b32 s{59+i}, 1, 0
        s_lshl_b32 s{56+i}, s{56+i}, 10
        """)
    for i in range(3):
        a(f"""
        s_cmp_eq_u32 s{59+i}, 1
        s_cselect_b32 s{56+i}, s{56+i}, {K2_LDS_DUMMY}
        s_mul_i32 s{59+i}, s{59+i}, {K2_STG}
        """)
    a(f"""
    v_and_b32 v{VT+2}, 31, v{VLANE}                ; m
    v_lshrrev_b32 v{VT+3}, 5, v{VLANE}             ; hh
    v_add_u32 v{VT+4}, s48, v{VT+2}
    s_movk_i32 s62, 1536
    v_mul_lo_u32 v{VX}, v{VT+4}, s62
    v_lshl_add_u32 v{VX}, v{VT+3}, 5, v{VX}
    s_lshl_b32 s62, s42, 6
    v_add_u32 v{VX}, s62, v{VX}
    ; stats
    v_add_u32 v{VT+4}, s49, v{VT+2}
    v_lshlrev_b32 v{VT+4}, 3, v{VT+4}
    s_mov_b32 s62, {WS_STATS}
    buffer_load_dwordx2 v[{ST}:{ST+1}], v{VT+4}, s[24:27], s62 offen
    """)
    def issue_x(stage):
        xr = XR + 8*(stage % 8)
        if 'nox' in DBG:
            a("s_nop 0"); a("s_nop 0")
        else:
            a(f"buffer_load_dwordx4 v[{xr}:{xr+3}], v{VX}, s[16:19], 0 offen offset:{128*stage}")
            a(f"buffer_load_dwordx4 v[{xr+4}:{xr+7}], v{VX}, s[16:19], 0 offen offset:{128*stage+16}")
            ops.extend([("x", stage)]*2)
    def issue_w(stage):
        a(f"s_mov_b32 s63, {stage*64*4608}")
        bi = stage % K2_NBUF
        for i in range(3):
            if bi == 0:
                a(f"s_mov_b32 m0, s{56+i}")
            else:
                a(f"s_mul_i32 s64, s{59+i}, {bi}")
                a(f"s_add_u32 m0, s64, s{56+i}")
            a("s_nop 0")
            if 'nodma' not in DBG:
                a(f"buffer_load_dwordx4 v{VD+i}, s[20:23], s63 offen lds")
                ops.append(("w", stage))
    ops.append(("st", 0))
    a(f"""
    v_lshrrev_b32 v{VT+2}, 8, v{VT+1}              ; b
    v_and_b32 v{VT+3}, 255, v{VT+1}
    v_mul_u32_u24 v{VT+3}, 6, v{VT+3}              ; i
    v_mul_u32_u24 v{VT+4}, 4608, v{VT+2}
    v_add_u32 v{VT+4}, v{VT+4}, v{VT+3}
    v_add_u32 v{VT+4}, s53, v{VT+4}
    v_lshlrev_b32 v{VT+4}, 2, v{VT+4}
    s_mov_b32 s62, {2*4608*4}
    s_mov_b32 s65, {2*2*4608*4}
    """)
    for sp in range(3):
        so = ["0", "s62", "s65"][sp]
        for h in range(3):
            r = BF + 6*sp + 2*h
            a(f"buffer_load_dwordx2 v[{r}:{r+1}], v{VT+4}, s[24:27], {so} offen offset:{8*h}")
            ops.append(("mod", 0))
    for st in range(7):
        issue_x(st)
        issue_w(st)
    issue_x(7)
    stamp(a)
    a(f"s_waitcnt vmcnt({need({('mod',0)})})")
    stamp(a)
    for e in range(6):
        a(f"v_add_f32 v{BF+e}, v{BF+e}, v{BF+6+e}")
        a(f"v_add_f32 v{BF+e}, v{BF+e}, v{BF+12+e}")
    for e in range(0, 6, 2):
        a(f"v_cvt_pk_bf16_f32 v{BF+20}, v{BF+e}, v{BF+e+1}")
        a(f"v_lshlrev_b32 v{BF+e}, 16, v{BF+20}")
        a(f"v_and_b32 v{BF+e+1}, 0xffff0000, v{BF+20}")
    a(f"""
    v_and_b32 v{VT+5}, 128, v{VT+1}
    v_cmp_ne_u32 vcc, 0, v{VT+5}
    """)
    for e in range(0, 6, 2):
        a(f"v_add_f32 v{BF+6}, 1.0, v{BF+e}")
        a(f"v_add_f32 v{BF+7}, 1.0, v{BF+e+1}")
        a(f"v_cvt_pk_bf16_f32 v{BF+20}, v{BF+6}, v{BF+7}")
        a(f"v_lshlrev_b32 v{BF+6}, 16, v{BF+20}")
        a(f"v_and_b32 v{BF+7}, 0xffff0000, v{BF+20}")
        a(f"v_cndmask_b32 v{BF+e}, v{BF+e}, v{BF+6}, vcc")
        a(f"v_cndmask_b32 v{BF+e+1}, v{BF+e+1}, v{BF+7}, vcc")
    a(f"""
    v_mul_u32_u24 v{VT+4}, 1536, v{VT+2}
    v_add_u32 v{VT+4}, v{VT+4}, v{VT+3}
    v_lshlrev_b32 v{VT+4}, 2, v{VT+4}
    v_add_u32 v{VT+4}, {K2_LDS_MOD}, v{VT+4}
    ds_write_b64 v{VT+4}, v[{BF}:{BF+1}]
    ds_write_b64 v{VT+4}, v[{BF+2}:{BF+3}] offset:8
    ds_write_b64 v{VT+4}, v[{BF+4}:{BF+5}] offset:16
    v_bfe_u32 v{VT+4}, v{VLANE}, 2, 2
    """)
    a(f"""
    v_lshrrev_b32 v{VT+5}, 5, v{VLANE}             ; hh
    v_lshl_add_u32 v{VT+4}, v{VT+5}, 4, v{VT+4}    ; hh*16 + r'
    s_lshl_b32 s62, s42, 5
    v_add_u32 v{VT+4}, s62, v{VT+4}                ; + kh*32
    v_mul_u32_u24 v{VL}, 320, v{VT+4}
    v_bfe_u32 v{VT+4}, v{VLANE}, 4, 1
    v_lshl_add_u32 v{VL}, v{VT+4}, 5, v{VL}
    v_and_b32 v{VT+4}, 3, v{VLANE}
    v_lshl_add_u32 v{VL}, v{VT+4}, 3, v{VL}
    s_mul_i32 s62, s50, 6144
    s_lshl_b32 s63, s42, 7
    s_add_u32 s62, s62, s63
    s_add_u32 s62, s62, {K2_LDS_MOD}
    v_add_u32 v{VL2}, {3*K2_STG}, v{VL}
    v_add_u32 v{VL3}, {6*K2_STG}, v{VL}
    v_lshlrev_b32 v{VM}, 6, v{VT+5}
    v_add_u32 v{VM}, s62, v{VM}
    """)
    for i in range(80):
        a(f"v_mov_b32 v{ACC+i}, 0")
    a("s_waitcnt lgkmcnt(0)")
    def modreads(stage, sp):
        base = (64*stage + 8*sp)*4
        r = SCH + 16*sp
        a(f"ds_read_b128 v[{r}:{r+3}], v{VM} offset:{base}")
        a(f"ds_read_b128 v[{r+4}:{r+7}], v{VM} offset:{base+16}")
        a(f"ds_read_b128 v[{r+8}:{r+11}], v{VM} offset:{base+3072}")
        a(f"ds_read_b128 v[{r+12}:{r+15}], v{VM} offset:{base+3072+16}")
    def trreads(stage, sp):
        if 'notr' in DBG: return
        bi = stage % K2_NBUF
        for T in range(5):
            r = BF + 20*sp + 4*T
            off = (bi % 3)*K2_STG + (8*sp)*320 + 64*T
            vl = [VL, VL2, VL3][bi // 3]
            a(f"ds_read_b64_tr_b16 v[{r}:{r+1}], v{vl} offset:{off}")
            a(f"ds_read_b64_tr_b16 v[{r+2}:{r+3}], v{vl} offset:{off+4*320}")
    def normalize(stage, sp):
        xr = XR + 8*(stage % 8) + 4*sp
        r = SCH + 16*sp
        out = []
        for d in range(4):
            t0, t1 = TMP + 2*(d & 1), TMP + 2*(d & 1) + 1
            out += [f"v_lshlrev_b32 v{t0}, 16, v{xr+d}",
                    f"v_and_b32 v{t1}, 0xffff0000, v{xr+d}",
                    f"v_fma_f32 v{t0}, v{t0}, v{ST}, v{ST+1}",
                    f"v_fma_f32 v{t1}, v{t1}, v{ST}, v{ST+1}",
                    f"v_fmac_f32 v{r+2*d}, v{t0}, v{r+8+2*d}",
                    f"v_fmac_f32 v{r+2*d+1}, v{t1}, v{r+8+2*d+1}",
                    f"v_cvt_pk_bf16_f32 v{AN+4*sp+d}, v{r+2*d}, v{r+2*d+1}"]
        if 'nonorm' in DBG: return out[-1:]
        return out
    def mfmas(sp):
        if 'nomfma' in DBG: return ["s_nop 0"]*5
        return [f"v_mfma_f32_32x32x16_bf16 v[{ACC+16*T}:{ACC+16*T+15}], v[{BF+20*sp+4*T}:{BF+20*sp+4*T+3}], v[{AN+4*sp}:{AN+4*sp+3}], v[{ACC+16*T}:{ACC+16*T+15}]" for T in range(5)]
    for stage in range(NSTG):
        a(f"; ---- stage {stage}")
        a(f"s_waitcnt vmcnt({need({('x',stage),('w',stage),('st',0)})})")
        a("s_barrier")
        if stage in (0, 1, 2, 6, 11): stamp(a)
        modreads(stage, 0)
        trreads(stage, 0)
        modreads(stage, 1)
        if stage >= 1 and stage + 6 < NSTG:
            issue_w(stage + 6)
        if stage >= 1 and stage + 7 < NSTG:
            issue_x(stage + 7)
        a("s_waitcnt lgkmcnt(14)")
        for l in normalize(stage, 0): a(l)
        trreads(stage, 1)
        a("s_waitcnt lgkmcnt(10)")
        n1 = normalize(stage, 1)
        m0 = mfmas(0)
        k = 0
        for T in range(5):
            a(m0[T])
            for l in n1[k:k+6]: a(l)
            k += 6
        assert k >= len(n1)
        a("s_waitcnt lgkmcnt(0)")
        a("s_nop 0")
        for l in mfmas(1): a(l)
    a(f"""
    s_nop 15
    s_nop 7
    s_barrier
    """)
    stamp(a)
    a(f"""
    v_lshlrev_b32 v{VT+2}, 4, v{VLANE}
    s_mul_i32 s62, s40, 10240
    v_add_u32 v{VT+2}, s62, v{VT+2}
    s_xor_b32 s63, s40, 4
    s_mul_i32 s63, s63, 10240
    v_lshlrev_b32 v{VT+3}, 4, v{VLANE}
    v_add_u32 v{VT+3}, s63, v{VT+3}
    s_cmp_eq_u32 s42, 0
    s_cbranch_scc0 K2_ep1
    """)
    for i in range(10):
        a(f"ds_write_b128 v{VT+2}, v[{ACC+40+4*i}:{ACC+40+4*i+3}] offset:{1024*i}")
    a("s_branch K2_ep2")
    a.label("K2_ep1")
    for i in range(10):
        a(f"ds_write_b128 v{VT+2}, v[{ACC+4*i}:{ACC+4*i+3}] offset:{1024*i}")
    a("s_waitcnt lgkmcnt(0)")
    for i in range(40):
        a(f"v_mov_b32 v{ACC+i}, v{ACC+40+i}")
    a.label("K2_ep2")
    a("s_waitcnt lgkmcnt(0)")
    a("s_barrier")
    for i in range(10):
        a(f"ds_read_b128 v[{BF+4*i}:{BF+4*i+3}], v{VT+3} offset:{1024*i}")
    a(f"""
    v_and_b32 v{VT+4}, 31, v{VLANE}
    v_add_u32 v{VT+4}, s51, v{VT+4}
    s_movk_i32 s62, 4608
    v_mul_lo_u32 v{VT+4}, v{VT+4}, s62
    v_lshrrev_b32 v{VT+5}, 5, v{VLANE}
    v_lshl_add_u32 v{VT+4}, v{VT+5}, 4, v{VT+4}
    s_mul_i32 s62, s42, 160
    s_add_u32 s62, s62, s55
    s_cmp_eq_u32 s52, 0
    s_cbranch_scc1 K2_end
    s_waitcnt lgkmcnt(0)
    """)
    for i in range(40):
        a(f"v_add_f32 v{ACC+i}, v{ACC+i}, v{BF+i}")
    for p in range(5):
        r = ACC + 8*p
        o = XR + 4*p
        a(f"""
        v_cvt_pk_bf16_f32 v{o}, v{r}, v{r+1}
        v_cvt_pk_bf16_f32 v{o+1}, v{r+2}, v{r+3}
        v_cvt_pk_bf16_f32 v{o+2}, v{r+4}, v{r+5}
        v_cvt_pk_bf16_f32 v{o+3}, v{r+6}, v{r+7}
        s_nop 1
        v_permlane32_swap_b32 v{o}, v{o+2}
        v_permlane32_swap_b32 v{o+1}, v{o+3}
        buffer_store_dwordx4 v[{o}:{o+3}], v{VT+4}, s[28:31], s62 offen offset:{32*p}
        """)
    stamp(a)
    if 'stamp' in DBG:
        a("s_waitcnt vmcnt(0)")
        stamp(a)
    stamp_out(a, VT)
    a("""
    K2_end:
    s_endpgm
    """)
    return a
```

```python
from common import *
import math

K3_STG = 36864
K3_NBUF = 4
K3_LDS = K3_STG * K3_NBUF
NSTG = 12
N_S = 144
N_V = 108
K3_GRID = N_S + 2 * N_V
SCALE_L2E = (768 ** -0.5) * math.log2(math.e)

class OpTrack:
    def __init__(self): self.ops = []
    def add(self, tag, n=1): self.ops.extend([tag] * n)
    def need(self, tags):
        last = max(i for i, t in enumerate(self.ops) if t in tags)
        return len(self.ops) - 1 - last

ACC = 0
FR = 80
VA = 128
def gen_k3():
    a = Asm()
    a(f"""
    s_cmp_ge_u32 s2, {K3_GRID}
    s_cbranch_scc1 K3_end
    s_load_dwordx4 s[8:11], s[0:1], {KA_WO_I}
    s_load_dwordx2 s[12:13], s[0:1], {KA_WS}
    v_and_b32 v200, 63, v0                         ; lane
    v_lshrrev_b32 v201, 6, v0
    s_nop 0
    v_readfirstlane_b32 s40, v201                  ; wave
    s_waitcnt lgkmcnt(0)
    """)
    srd_off(a, 16, 12, WS_QKV, 2*1056*2304*2)
    a(f"""
    s_cmp_ge_u32 s2, {N_S}
    s_cbranch_scc1 K3_V
    s_and_b32 s41, s2, 7                           ; kt
    s_lshr_b32 s42, s2, 3                          ; b*9+qt
    s_cmp_ge_u32 s42, 9
    s_cselect_b32 s43, 1, 0                        ; b
    s_mul_i32 s44, s43, 9
    s_sub_u32 s42, s42, s44                        ; qt
    """)
    srd_off(a, 20, 12, WS_P, 2*1056*1056*2)
    srd_off(a, 24, 12, WS_PSTAT, 2*1056*8*8)
    a("""
    s_cmp_eq_u32 s41, 7
    s_cbranch_scc1 K3_S5
    """)
    gen_s(a, 4, "S4")
    a.label("K3_S5")
    gen_s(a, 5, "S5")
    a.label("K3_V")
    gen_v(a)
    a("""
    K3_end:
    s_endpgm
    """)
    return a

def common_q_dma_setup(a, vq_even, vq_odd):
    a(f"""
    v_lshrrev_b32 v202, 3, v200                    ; row_in
    v_and_b32 v203, 7, v200                        ; slot
    v_lshrrev_b32 v204, 4, v200                    ; i>>4 (0..3)
    v_xor_b32 v205, v203, v204
    v_xor_b32 v206, 4, v205
    v_mul_u32_u24 v202, 4608, v202
    v_lshl_add_u32 v{vq_even}, v205, 4, v202
    v_lshl_add_u32 v{vq_odd}, v206, 4, v202
    """)

def gen_s(a, NTU, tag):
    ot = OpTrack()
    VQE, VQO = 190, 191
    common_q_dma_setup(a, VQE, VQO)
    a(f"""
    s_mul_i32 s45, s43, 1056
    s_lshl_b32 s46, s42, 7
    s_add_u32 s46, s46, s45                        ; q row0
    s_lshl_b32 s47, s41, 7
    s_add_u32 s47, s47, s45
    s_mul_i32 s48, s46, 4608
    s_mul_i32 s49, s47, 4608
    s_add_u32 s49, s49, 1536
    s_mul_i32 s50, s40, {4*8*4608}
    s_add_u32 s48, s48, s50
    s_mul_i32 s50, s40, {NTU*8*4608}
    s_add_u32 s49, s49, s50
    s_lshl_b32 s51, s40, 12
    s_mul_i32 s52, s40, {NTU*1024}
    s_add_u32 s52, s52, 16384
    """)
    VKE, VKO = 192, 193
    if NTU % 2 == 0:
        a(f"v_mov_b32 v{VKE}, v{VQE}")
        a(f"v_mov_b32 v{VKO}, v{VQO}")
    else:
        a(f"""
        s_and_b32 s53, s40, 1
        s_cmp_eq_u32 s53, 1
        s_cselect_b64 s[54:55], -1, 0
        s_nop 1
        v_cndmask_b32 v{VKE}, v{VQE}, v{VQO}, s[54:55]
        v_cndmask_b32 v{VKO}, v{VQO}, v{VQE}, s[54:55]
        """)
    def issue(stage):
        bo = (stage % K3_NBUF) * K3_STG
        for i in range(4):
            a(f"s_add_u32 m0, s51, {bo + i*1024}")
            a(f"s_add_u32 s56, s48, {stage*128 + i*8*4608}")
            a(f"buffer_load_dwordx4 v{VQE if i % 2 == 0 else VQO}, s[16:19], s56 offen lds")
        for i in range(NTU):
            a(f"s_add_u32 m0, s52, {bo + i*1024}")
            a(f"s_add_u32 s56, s49, {stage*128 + i*8*4608}")
            a(f"buffer_load_dwordx4 v{VKE if i % 2 == 0 else VKO}, s[16:19], s56 offen lds")
        ot.add(("d", stage), 4 + NTU)
    for st in range(K3_NBUF):
        issue(st)
    VQA, VKA = 130, 134
    CQ, CK = 138, 142
    a(f"""
    v_and_b32 v202, 31, v200                       ; m / i
    v_lshrrev_b32 v203, 5, v200                    ; hh
    v_bfe_u32 v204, v202, 1, 3                     ; swz(m)
    v_xor_b32 v204, v204, v203
    v_lshlrev_b32 v204, 4, v204
    v_lshl_add_u32 v204, v202, 7, v204             ; m*128 + ..
    s_lshl_b32 s53, s40, 12
    v_add_u32 v{VQA}, s53, v204
    v_and_b32 v204, 3, v202                        ; a
    v_bfe_u32 v205, v202, 2, 1                     ; h'
    v_lshl_add_u32 v204, v205, 3, v204
    v_bfe_u32 v205, v202, 3, 1                     ; q4&1
    v_lshl_add_u32 v204, v205, 2, v204
    v_bfe_u32 v205, v202, 4, 1                     ; q4>>1
    v_lshl_add_u32 v204, v205, 4, v204
    v_bfe_u32 v205, v204, 1, 3                     ; swz
    v_xor_b32 v205, v205, v203
    v_lshlrev_b32 v205, 4, v205
    v_lshl_add_u32 v205, v204, 7, v205
    v_add_u32 v{VKA}, 16384, v205
    """)
    for s in range(1, 4):
        a(f"v_xor_b32 v{VQA+s}, {s << 5}, v{VQA}")
        a(f"v_xor_b32 v{VKA+s}, {s << 5}, v{VKA}")
    NF = NTU + 1
    def setbuf(stage):
        bo = (stage % K3_NBUF) * K3_STG
        for s in range(4):
            a(f"v_add_u32 v{CQ+s}, {bo}, v{VQA+s}")
            a(f"v_add_u32 v{CK+s}, {bo}, v{VKA+s}")
    def reads(g):
        s = g % 4
        f = FR + 24 * (g & 1)
        a(f"ds_read_b128 v[{f}:{f+3}], v{CQ+s}")
        for T in range(NTU):
            a(f"ds_read_b128 v[{f+4+4*T}:{f+7+4*T}], v{CK+s} offset:{4096*T}")
    def mfmas(g):
        f = FR + 24 * (g & 1)
        for T in range(NTU):
            c = "0" if g == 0 else f"v[{ACC+16*T}:{ACC+16*T+15}]"
            a(f"v_mfma_f32_32x32x16_bf16 v[{ACC+16*T}:{ACC+16*T+15}], v[{f+4+4*T}:{f+7+4*T}], v[{f}:{f+3}], {c}")
    a(f"s_waitcnt vmcnt({ot.need({('d',0)})})")
    a("s_barrier")
    setbuf(0)
    reads(0)
    NG = NSTG * 4
    for g in range(NG):
        st = g // 4
        last = (g % 4 == 3)
        if g + 1 < NG:
            if last:
                a("s_waitcnt lgkmcnt(0)")
                a(f"s_waitcnt vmcnt({ot.need({('d',st+1)})})")
                a("s_barrier")
                if st + K3_NBUF < NSTG:
                    issue(st + K3_NBUF)
                setbuf(st + 1)
                reads(g + 1)
            else:
                reads(g + 1)
                a(f"s_waitcnt lgkmcnt({NF})")
        else:
            a("s_waitcnt lgkmcnt(0)")
        mfmas(g)
    NE = 16 * NTU
    a("s_nop 15")
    a("s_nop 7")
    M = 150
    a(f"v_max3_f32 v{M}, v{ACC}, v{ACC+1}, v{ACC+2}")
    i = 3
    while i + 1 < NE:
        a(f"v_max3_f32 v{M}, v{M}, v{ACC+i}, v{ACC+i+1}")
        i += 2
    if i < NE:
        a(f"v_max_f32 v{M}, v{M}, v{ACC+i}")
    a(f"""
    v_mov_b32 v{M+1}, v{M}
    s_nop 1
    v_permlane32_swap_b32 v{M}, v{M+1}
    s_nop 1
    v_max_f32 v{M}, v{M}, v{M+1}
    s_mov_b32 s53, {hex(f32bits(SCALE_L2E))}
    v_mul_f32 v{M}, s53, v{M}
    v_sub_f32 v{M+2}, 0, v{M}
    v_mov_b32 v{M+3}, s53
    """)
    for i in range(NE):
        a(f"v_fma_f32 v{ACC+i}, v{ACC+i}, v{M+3}, v{M+2}")
    for i in range(NE):
        a(f"v_exp_f32 v{ACC+i}, v{ACC+i}")
    a("s_nop 0")
    L = M + 4
    a(f"v_add_f32 v{L}, v{ACC}, v{ACC+1}")
    a(f"v_add_f32 v{L+1}, v{ACC+2}, v{ACC+3}")
    for i in range(4, NE, 2):
        a(f"v_add_f32 v{L}, v{L}, v{ACC+i}")
        a(f"v_add_f32 v{L+1}, v{L+1}, v{ACC+i+1}")
    a(f"""
    v_add_f32 v{L}, v{L}, v{L+1}
    v_mov_b32 v{L+1}, v{L}
    s_nop 1
    v_permlane32_swap_b32 v{L}, v{L+1}
    s_nop 1
    v_add_f32 v{L}, v{L}, v{L+1}
    s_lshl_b32 s53, s42, 7
    s_lshl_b32 s54, s40, 5
    s_add_u32 s53, s53, s54
    s_cmp_ge_u32 s53, 1056
    s_cbranch_scc1 K3_end
    s_add_u32 s53, s53, s45
    v_add_u32 v204, s53, v202                      ; row
    v_mul_u32_u24 v205, 2112, v204
    v_lshl_add_u32 v205, v203, 4, v205
    s_lshl_b32 s54, s41, 8
    """)
    for T in range(NTU):
        for h in range(2):
            r = ACC + 16*T + 8*h
            o = FR + 4 * ((2*T + h) % 8)
            a(f"""
            v_cvt_pk_bf16_f32 v{o}, v{r}, v{r+1}
            v_cvt_pk_bf16_f32 v{o+1}, v{r+2}, v{r+3}
            v_cvt_pk_bf16_f32 v{o+2}, v{r+4}, v{r+5}
            v_cvt_pk_bf16_f32 v{o+3}, v{r+6}, v{r+7}
            buffer_store_dwordx4 v[{o}:{o+3}], v205, s[20:23], s54 offen offset:{64*T + 32*h}
            """)
    a(f"""
    v_mov_b32 v{M+1}, v{L}
    v_lshlrev_b32 v204, 6, v204                    ; row*64
    s_lshl_b32 s54, s41, 3
    v_cmp_gt_u32 vcc, 32, v200
    s_and_saveexec_b64 s[56:57], vcc
    buffer_store_dwordx2 v[{M}:{M+1}], v204, s[24:27], s54 offen
    s_endpgm
    """)

def gen_v(a):
    ot = OpTrack()
    VQE, VQO, VW = 190, 191, 192
    a(f"""
    s_sub_u32 s41, s2, {N_S}
    s_cmp_ge_u32 s41, {N_V}
    s_cselect_b32 s42, 1, 0
    s_cselect_b32 s20, s10, s8
    s_cselect_b32 s21, s11, s9
    s_mov_b32 s22, {768*1536}
    s_mov_b32 s23, 0x00020000
    s_mul_i32 s43, s42, {N_V}
    s_sub_u32 s41, s41, s43
    s_cmp_ge_u32 s41, 54
    s_cselect_b32 s43, 1, 0                        ; b
    s_mul_i32 s44, s43, 54
    s_sub_u32 s41, s41, s44                        ; rt*6+ct
    s_mul_i32 s44, s41, 43
    s_lshr_b32 s44, s44, 8                         ; rt = /6
    s_mul_i32 s45, s44, 6
    s_sub_u32 s45, s41, s45                        ; ct
    s_mul_i32 s46, s42, {WS_VT2 - WS_VT}
    s_add_u32 s24, s12, s46
    s_addc_u32 s25, s13, 0
    s_add_u32 s24, s24, {WS_VT}
    s_addc_u32 s25, s25, 0
    s_mov_b32 s26, {2*768*2112}
    s_mov_b32 s27, 0x00020000
    """)
    common_q_dma_setup(a, VQE, VQO)
    a(f"""
    s_mul_i32 s46, s43, 1056
    s_lshl_b32 s47, s44, 7
    s_add_u32 s47, s47, s46
    s_mul_i32 s48, s47, 4608
    s_add_u32 s48, s48, 3072
    s_mul_i32 s50, s40, {4*8*4608}
    s_add_u32 s48, s48, s50
    s_lshl_b32 s51, s40, 12
    v_lshrrev_b32 v202, 4, v200
    v_and_b32 v203, 15, v200
    v_lshlrev_b32 v204, 2, v202
    v_xor_b32 v203, v203, v204
    v_mul_u32_u24 v202, 1536, v202
    v_lshl_add_u32 v{VW}, v203, 4, v202
    s_lshl_b32 s49, s45, 8                         ; ct*128*2
    s_mul_i32 s50, s40, {16*1536}
    s_add_u32 s49, s49, s50
    s_lshl_b32 s52, s40, 12
    s_add_u32 s52, s52, 16384
    """)
    def issue(stage):
        bo = (stage % K3_NBUF) * K3_STG
        for i in range(4):
            a(f"s_add_u32 m0, s51, {bo + i*1024}")
            a(f"s_add_u32 s56, s48, {stage*128 + i*8*4608}")
            a(f"buffer_load_dwordx4 v{VQE if i % 2 == 0 else VQO}, s[16:19], s56 offen lds")
        for i in range(4):
            a(f"s_add_u32 m0, s52, {bo + i*1024}")
            a(f"s_add_u32 s56, s49, {stage*64*1536 + i*4*1536}")
            a(f"buffer_load_dwordx4 v{VW}, s[20:23], s56 offen lds")
        ot.add(("d", stage), 8)
    for st in range(K3_NBUF):
        issue(st)
    VVA = 130
    VWA = 134
    CV, CW = 138, 142
    a(f"""
    v_and_b32 v202, 31, v200                       ; i
    v_lshrrev_b32 v203, 5, v200                    ; hh
    v_and_b32 v204, 3, v202
    v_bfe_u32 v205, v202, 2, 1
    v_lshl_add_u32 v204, v205, 3, v204
    v_bfe_u32 v205, v202, 3, 1
    v_lshl_add_u32 v204, v205, 2, v204
    v_bfe_u32 v205, v202, 4, 1
    v_lshl_add_u32 v204, v205, 4, v204
    v_bfe_u32 v205, v204, 1, 3
    v_xor_b32 v205, v205, v203
    v_lshlrev_b32 v205, 4, v205
    v_lshl_add_u32 v205, v204, 7, v205
    s_lshl_b32 s53, s40, 12
    v_add_u32 v{VVA}, s53, v205
    v_bfe_u32 v204, v200, 2, 2                     ; r'
    v_lshl_add_u32 v205, v203, 3, v204             ; 8hh + r'
    v_lshlrev_b32 v205, 8, v205                    ; *256
    v_lshl_add_u32 v205, v204, 6, v205             ; + 4*r'*16   (T=0: T^r' = r')
    v_bfe_u32 v206, v200, 4, 1
    v_lshl_add_u32 v205, v206, 5, v205
    v_and_b32 v206, 3, v200
    v_lshl_add_u32 v205, v206, 3, v205             ; (c>>1)*16 + (c&1)*8 = c*8
    v_add_u32 v{VWA}, 16384, v205
    """)
    for s in range(1, 4):
        a(f"v_xor_b32 v{VVA+s}, {s << 5}, v{VVA}")
        a(f"v_xor_b32 v{VWA+s}, {s << 6}, v{VWA}")
    def setbuf(stage):
        bo = (stage % K3_NBUF) * K3_STG
        for s in range(4):
            a(f"v_add_u32 v{CV+s}, {bo}, v{VVA+s}")
            a(f"v_add_u32 v{CW+s}, {bo}, v{VWA+s}")
    def reads(g):
        s = g % 4
        f = FR + 24 * (g & 1)
        a(f"ds_read_b128 v[{f}:{f+3}], v{CV+s}")
        for T in range(4):
            a(f"ds_read_b64_tr_b16 v[{f+4+4*T}:{f+5+4*T}], v{CW+T} offset:{4096*s}")
            a(f"ds_read_b64_tr_b16 v[{f+6+4*T}:{f+7+4*T}], v{CW+T} offset:{4096*s+1024}")
    def mfmas(g):
        f = FR + 24 * (g & 1)
        for T in range(4):
            c = "0" if g == 0 else f"v[{ACC+16*T}:{ACC+16*T+15}]"
            a(f"v_mfma_f32_32x32x16_bf16 v[{ACC+16*T}:{ACC+16*T+15}], v[{f}:{f+3}], v[{f+4+4*T}:{f+7+4*T}], {c}")
    a(f"s_waitcnt vmcnt({ot.need({('d',0)})})")
    a("s_barrier")
    setbuf(0)
    reads(0)
    NG = NSTG * 4
    for g in range(NG):
        st = g // 4
        last = (g % 4 == 3)
        if g + 1 < NG:
            if last:
                a("s_waitcnt lgkmcnt(0)")
                a(f"s_waitcnt vmcnt({ot.need({('d',st+1)})})")
                a("s_barrier")
                if st + K3_NBUF < NSTG:
                    issue(st + K3_NBUF)
                setbuf(st + 1)
                reads(g + 1)
            else:
                reads(g + 1)
                a("s_waitcnt lgkmcnt(9)")
        else:
            a("s_waitcnt lgkmcnt(0)")
        mfmas(g)
    a(f"""
    s_nop 15
    s_nop 7
    s_lshl_b32 s53, s44, 7
    s_lshl_b32 s54, s40, 5
    s_add_u32 s53, s53, s54
    s_cmp_ge_u32 s53, 1056
    s_cbranch_scc1 K3_end
    s_mul_i32 s54, s43, 768
    s_lshl_b32 s55, s45, 7
    s_add_u32 s54, s54, s55
    v_add_u32 v204, s54, v202
    v_mul_u32_u24 v205, 2112, v204
    v_lshl_add_u32 v205, v203, 4, v205
    s_lshl_b32 s54, s53, 1
    """)
    for T in range(4):
        for h in range(2):
            r = ACC + 16*T + 8*h
            o = FR + 4 * ((2*T + h) % 8)
            a(f"""
            v_cvt_pk_bf16_f32 v{o}, v{r}, v{r+1}
            v_cvt_pk_bf16_f32 v{o+1}, v{r+2}, v{r+3}
            v_cvt_pk_bf16_f32 v{o+2}, v{r+4}, v{r+5}
            v_cvt_pk_bf16_f32 v{o+3}, v{r+6}, v{r+7}
            s_add_u32 s55, s54, {T*32*2112 + 32*h}
            buffer_store_dwordx4 v[{o}:{o+3}], v205, s[24:27], s55 offen
            """)
    a("s_endpgm")
```

```python
from common import *
from k3 import OpTrack
K4_STG = 20480
K4_NBUF = 7
K4_LDS_G = K4_STG * K4_NBUF
K4_LDS = K4_LDS_G + 512
K4_GRID = 272
NST = 17

def gen_k4():
    a = Asm()
    ot = OpTrack()
    ACC = 0; TM = 48
    FR = 144
    CF = 176
    XR = 184
    VPE, VPO, VVE, VVO = 196, 197, 198, 199
    VPA, VVA = 200, 202
    CP, CV = 204, 206
    VLANE, VM_, VHH = 208, 209, 210
    T0 = 212
    a(f"""
    s_cmp_ge_u32 s2, {K4_GRID}
    s_cbranch_scc1 K4_end
    s_load_dwordx4 s[4:7], s[0:1], {KA_XIMG}
    s_load_dwordx2 s[8:9], s[0:1], {KA_OUT}
    s_load_dwordx2 s[12:13], s[0:1], {KA_WS}
    v_and_b32 v{VLANE}, 63, v0
    v_lshrrev_b32 v{T0}, 6, v0
    v_mov_b32 v{T0+1}, v0
    s_nop 0
    v_readfirstlane_b32 s40, v{T0}
    s_and_b32 s41, s40, 1                          ; mh
    s_lshr_b32 s42, s40, 1                         ; kh
    s_cmp_ge_u32 s2, 256
    s_cselect_b32 s43, 1, 0                        ; is_txt
    s_cbranch_scc1 K4_txt
    s_lshr_b32 s44, s2, 7                          ; b
    s_bfe_u32 s45, s2, 0x40003
    s_and_b32 s46, s2, 7                           ; nt
    s_lshl_b32 s47, s45, 6
    s_branch K4_dec
    K4_txt:
    s_bfe_u32 s44, s2, 0x10003                     ; b = (id>>3)&1
    s_and_b32 s46, s2, 7
    s_movk_i32 s47, 1024
    K4_dec:
    s_waitcnt lgkmcnt(0)
    """)
    srd(a, 16, 12, WS_QKV)
    srd_off(a, 20, 12, WS_P, 2*1056*2112)
    srd_off(a, 24, 12, WS_PSTAT, 2*1056*64)
    a(f"""
    s_mul_i32 s48, s43, {WS_VT2 - WS_VT}
    s_add_u32 s28, s12, s48
    s_addc_u32 s29, s13, 0
    s_add_u32 s28, s28, {WS_VT}
    s_addc_u32 s29, s29, 0
    s_mov_b32 s30, {2*768*2112}
    s_mov_b32 s31, 0x00020000
    s_cmp_eq_u32 s43, 1
    s_cselect_b32 s32, s6, s4
    s_cselect_b32 s33, s7, s5
    s_mov_b32 s48, {2048*1536}
    s_cselect_b32 s34, {64*1536}, s48
    s_mov_b32 s35, 0x00020000
    s_cselect_b32 s48, 3145728, 0
    s_add_u32 s36, s8, s48
    s_addc_u32 s37, s9, 0
    s_mov_b32 s38, s34
    s_mov_b32 s39, 0x00020000
    v_lshrrev_b32 v{T0+2}, 3, v{VLANE}
    v_and_b32 v{T0+3}, 7, v{VLANE}
    v_lshrrev_b32 v{T0+4}, 4, v{VLANE}
    v_xor_b32 v{T0+5}, v{T0+3}, v{T0+4}
    v_xor_b32 v{T0+6}, 4, v{T0+5}
    v_mul_u32_u24 v{T0+2}, 2112, v{T0+2}
    v_lshl_add_u32 v{VPE}, v{T0+5}, 4, v{T0+2}
    v_lshl_add_u32 v{VPO}, v{T0+6}, 4, v{T0+2}
    s_and_b32 s48, s40, 1
    s_cmp_eq_u32 s48, 1
    s_cselect_b64 s[54:55], -1, 0
    s_nop 1
    v_cndmask_b32 v{VVE}, v{VPE}, v{VPO}, s[54:55]
    v_cndmask_b32 v{VVO}, v{VPO}, v{VPE}, s[54:55]
    ; bases
    s_mul_i32 s48, s44, 1056
    s_add_u32 s48, s48, s47
    s_mul_i32 s49, s48, 2112
    s_mul_i32 s50, s40, {16*2112}
    s_add_u32 s49, s49, s50
    s_mul_i32 s50, s44, 768
    s_mul_i32 s51, s46, 96
    s_add_u32 s50, s50, s51                        ; V' row0
    s_mul_i32 s50, s50, 2112
    s_mul_i32 s51, s40, {24*2112}
    s_add_u32 s50, s50, s51
    s_lshl_b32 s51, s40, 11
    s_mul_i32 s52, s40, 3072
    s_add_u32 s52, s52, 8192
    """)
    def issue(stage):
        bo = (stage % K4_NBUF) * K4_STG
        for i in range(2):
            a(f"s_add_u32 m0, s51, {bo + i*1024}")
            a(f"s_add_u32 s56, s49, {stage*128 + i*8*2112}")
            a(f"buffer_load_dwordx4 v{VPE if i % 2 == 0 else VPO}, s[20:23], s56 offen lds")
        for i in range(3):
            a(f"s_add_u32 m0, s52, {bo + i*1024}")
            a(f"s_add_u32 s56, s50, {stage*128 + i*8*2112}")
            a(f"buffer_load_dwordx4 v{VVE if i % 2 == 0 else VVO}, s[28:31], s56 offen lds")
        ot.add(("d", stage), 5)
    a(f"""
    v_and_b32 v{VM_}, 31, v{VLANE}
    v_lshrrev_b32 v{VHH}, 5, v{VLANE}
    s_lshl_b32 s53, s41, 5
    s_add_u32 s53, s53, s48
    v_add_u32 v{T0+2}, s53, v{VM_}
    v_lshlrev_b32 v{T0+2}, 6, v{T0+2}
    """)
    PS = FR
    for i in range(4):
        a(f"buffer_load_dwordx4 v[{PS+4*i}:{PS+4*i+3}], v{T0+2}, s[24:27], 0 offen offset:{16*i}")
    ot.add(("ps", 0), 4)
    a(f"""
    s_mul_i32 s53, s43, 2304
    s_mul_i32 s54, s46, 96
    s_add_u32 s53, s53, s54
    s_add_u32 s53, s53, 1536
    s_mul_i32 s54, s44, 4608
    s_add_u32 s53, s53, s54
    v_add_u32 v{T0+3}, s53, v{T0+1}
    v_lshlrev_b32 v{T0+3}, 2, v{T0+3}
    s_mov_b32 s53, {2*4608*4}
    s_mov_b32 s54, {4*4608*4}
    buffer_load_dword v{T0+4}, v{T0+3}, s[16:19], 0 offen
    buffer_load_dword v{T0+5}, v{T0+3}, s[16:19], s53 offen
    buffer_load_dword v{T0+6}, v{T0+3}, s[16:19], s54 offen
    s_cmp_eq_u32 s43, 1
    s_cselect_b32 s53, 32, 1024
    s_mul_i32 s53, s53, s44                        ; b*(1024|32)
    s_cselect_b32 s54, 0, s47
    s_add_u32 s53, s53, s54
    s_lshl_b32 s54, s41, 5
    s_add_u32 s53, s53, s54
    v_add_u32 v{T0+7}, s53, v{VM_}
    v_mul_u32_u24 v{T0+7}, 1536, v{T0+7}
    v_lshl_add_u32 v{T0+7}, v{VHH}, 4, v{T0+7}     ; + hh*16 B
    s_mul_i32 s57, s46, 192                        ; nt*96*2
    s_mul_i32 s53, s42, 96
    s_add_u32 s57, s57, s53
    """)
    ot.add(("g", 0), 3)
    for q in range(3):
        a(f"buffer_load_dwordx4 v[{XR+4*q}:{XR+4*q+3}], v{T0+7}, s[32:35], s57 offen offset:{32*q}")
    ot.add(("x", 0), 3)
    for st in range(K4_NBUF):
        issue(st)
    a(f"s_waitcnt vmcnt({ot.need({('ps',0)})})")
    a(f"v_max3_f32 v{T0+8}, v{PS}, v{PS+2}, v{PS+4}")
    a(f"v_max3_f32 v{T0+8}, v{T0+8}, v{PS+6}, v{PS+8}")
    a(f"v_max3_f32 v{T0+8}, v{T0+8}, v{PS+10}, v{PS+12}")
    a(f"v_max_f32 v{T0+8}, v{T0+8}, v{PS+14}")
    for t in range(8):
        a(f"v_sub_f32 v{CF+t}, v{PS+2*t}, v{T0+8}")
    for t in range(8):
        a(f"v_exp_f32 v{CF+t}, v{CF+t}")
    a("s_nop 0")
    a(f"v_mul_f32 v{T0+9}, v{CF}, v{PS+1}")
    for t in range(1, 8):
        a(f"v_fmac_f32 v{T0+9}, v{CF+t}, v{PS+2*t+1}")
    a(f"v_rcp_f32 v{T0+9}, v{T0+9}")
    a("s_nop 0")
    for t in range(8):
        a(f"v_mul_f32 v{CF+t}, v{CF+t}, v{T0+9}")
    a(f"""
    s_waitcnt vmcnt({ot.need({('g',0)})})
    v_add_f32 v{T0+4}, v{T0+4}, v{T0+5}
    v_add_f32 v{T0+4}, v{T0+4}, v{T0+6}
    v_cvt_pk_bf16_f32 v{T0+4}, v{T0+4}, v{T0+4}
    v_lshlrev_b32 v{T0+4}, 16, v{T0+4}
    v_lshlrev_b32 v{T0+5}, 2, v{T0+1}
    v_add_u32 v{T0+5}, {K4_LDS_G}, v{T0+5}
    v_cmp_gt_u32 vcc, 96, v{T0+1}
    s_and_saveexec_b64 s[58:59], vcc
    ds_write_b32 v{T0+5}, v{T0+4}
    s_mov_b64 exec, s[58:59]
    v_bfe_u32 v{T0+4}, v{VM_}, 1, 3
    v_xor_b32 v{T0+4}, v{T0+4}, v{VHH}
    v_lshlrev_b32 v{T0+4}, 4, v{T0+4}
    v_lshl_add_u32 v{T0+4}, v{VM_}, 7, v{T0+4}
    s_lshl_b32 s53, s41, 12
    v_add_u32 v{T0+4}, s53, v{T0+4}                ; s=0 address
    v_and_b32 v{T0+5}, 3, v{VM_}
    v_bfe_u32 v{T0+6}, v{VM_}, 2, 1
    v_lshl_add_u32 v{T0+5}, v{T0+6}, 3, v{T0+5}
    v_bfe_u32 v{T0+6}, v{VM_}, 3, 1
    v_lshl_add_u32 v{T0+5}, v{T0+6}, 2, v{T0+5}
    v_bfe_u32 v{T0+6}, v{VM_}, 4, 1
    v_lshl_add_u32 v{T0+5}, v{T0+6}, 4, v{T0+5}
    v_bfe_u32 v{T0+6}, v{T0+5}, 1, 3
    v_xor_b32 v{T0+6}, v{T0+6}, v{VHH}
    v_lshlrev_b32 v{T0+6}, 4, v{T0+6}
    v_lshl_add_u32 v{T0+6}, v{T0+5}, 7, v{T0+6}
    v_add_u32 v{T0+6}, 8192, v{T0+6}               ; s=0 address
    s_lshl_b32 s53, s42, 6
    v_xor_b32 v{VPA}, s53, v{T0+4}
    v_xor_b32 v{VVA}, s53, v{T0+6}
    v_xor_b32 v{VPA+1}, 32, v{VPA}
    v_xor_b32 v{VVA+1}, 32, v{VVA}
    s_lshl_b32 s53, s42, 5
    v_xor_b32 v{T0+10}, s53, v{T0+4}
    v_xor_b32 v{T0+11}, s53, v{T0+6}
    """)
    steps = []
    for st in range(16):
        steps += [(st, 0), (st, 1)]
    steps += [(16, 0)]
    def setbuf(stage):
        bo = (stage % K4_NBUF) * K4_STG
        if stage < 16:
            for ls in range(2):
                a(f"v_add_u32 v{CP+ls}, {bo}, v{VPA+ls}")
                a(f"v_add_u32 v{CV+ls}, {bo}, v{VVA+ls}")
        else:
            a(f"v_add_u32 v{CP}, {bo}, v{T0+10}")
            a(f"v_add_u32 v{CV}, {bo}, v{T0+11}")
    def reads(g):
        st, ls = steps[g]
        f = FR + 16 * (g & 1)
        a(f"ds_read_b128 v[{f}:{f+3}], v{CP+ls}")
        for T in range(3):
            a(f"ds_read_b128 v[{f+4+4*T}:{f+7+4*T}], v{CV+ls} offset:{4096*T}")
    def tile_of(st): return min(st // 2, 7)
    def mfmas(g):
        st, ls = steps[g]
        t = tile_of(st)
        first = (st == 2*t and ls == 0)
        f = FR + 16 * (g & 1)
        tm = TM + 48 * (t & 1)
        out = []
        for T in range(3):
            c = "0" if first else f"v[{tm+16*T}:{tm+16*T+15}]"
            out.append(f"v_mfma_f32_32x32x16_bf16 v[{tm+16*T}:{tm+16*T+15}], v[{f+4+4*T}:{f+7+4*T}], v[{f}:{f+3}], {c}")
        return out
    def scale(t):
        tm = TM + 48 * (t & 1)
        if t == 0:
            return [f"v_mul_f32 v{ACC+i}, v{tm+i}, v{CF+t}" for i in range(48)]
        return [f"v_fmac_f32 v{ACC+i}, v{tm+i}, v{CF+t}" for i in range(48)]
    a("s_waitcnt lgkmcnt(0)")
    a(f"s_waitcnt vmcnt({ot.need({('d',0)})})")
    a("s_barrier")
    setbuf(0)
    reads(0)
    NG = len(steps)
    pend = []
    for g in range(NG):
        st, ls = steps[g]
        nxt = steps[g+1] if g + 1 < NG else None
        if nxt is not None:
            if nxt[0] != st:
                a("s_waitcnt lgkmcnt(0)")
                a(f"s_waitcnt vmcnt({ot.need({('d',nxt[0])})})")
                a("s_barrier")
                if st + K4_NBUF < NST:
                    issue(st + K4_NBUF)
                setbuf(nxt[0])
                reads(g + 1)
            else:
                reads(g + 1)
                a("s_waitcnt lgkmcnt(4)")
        else:
            a("s_waitcnt lgkmcnt(0)")
        ms = mfmas(g)
        t = tile_of(st)
        first_of_tile_plus = (st == 2*t and ls == 1) or (st == 2*t + 1) or (st == 16)
        for m in ms:
            a(m)
            if first_of_tile_plus and pend:
                for l in pend[:8]: a(l)
                pend = pend[8:]
        if nxt is not None and tile_of(nxt[0]) != t:
            assert not pend
            pend = scale(t)
    a("s_nop 15")
    a("s_nop 7")
    for l in pend: a(l)
    for l in scale(7): a(l)
    a(f"""
    s_barrier
    v_lshlrev_b32 v{T0+2}, 4, v{VLANE}
    s_mul_i32 s53, s40, 6144
    v_add_u32 v{T0+3}, s53, v{T0+2}
    s_xor_b32 s54, s40, 2
    s_mul_i32 s54, s54, 6144
    v_add_u32 v{T0+2}, s54, v{T0+2}
    s_cmp_eq_u32 s42, 0
    s_cbranch_scc0 K4_ep1
    """)
    for i in range(6):
        a(f"ds_write_b128 v{T0+3}, v[{ACC+24+4*i}:{ACC+24+4*i+3}] offset:{1024*i}")
    a("s_branch K4_ep2")
    a.label("K4_ep1")
    for i in range(6):
        a(f"ds_write_b128 v{T0+3}, v[{ACC+4*i}:{ACC+4*i+3}] offset:{1024*i}")
    a("s_waitcnt lgkmcnt(0)")
    for i in range(24):
        a(f"v_mov_b32 v{ACC+i}, v{ACC+24+i}")
    a.label("K4_ep2")
    a("s_waitcnt lgkmcnt(0)")
    a("s_barrier")
    for i in range(6):
        a(f"ds_read_b128 v[{TM+4*i}:{TM+4*i+3}], v{T0+2} offset:{1024*i}")
    a(f"""
    s_mul_i32 s53, s42, 192
    s_add_u32 s53, s53, {K4_LDS_G}
    v_lshlrev_b32 v{T0+4}, 5, v{VHH}
    v_add_u32 v{T0+4}, s53, v{T0+4}
    """)
    for q in range(3):
        a(f"ds_read_b128 v[{TM+24+8*q}:{TM+24+8*q+3}], v{T0+4} offset:{64*q}")
        a(f"ds_read_b128 v[{TM+24+8*q+4}:{TM+24+8*q+7}], v{T0+4} offset:{64*q+16}")
    a(f"""
    s_and_b32 s53, s43, s41
    s_cmp_eq_u32 s53, 1
    s_cbranch_scc1 K4_end
    s_waitcnt lgkmcnt(0) vmcnt(0)
    """)
    for i in range(24):
        a(f"v_add_f32 v{ACC+i}, v{ACC+i}, v{TM+i}")
    for q in range(3):
        xr = XR + 4*q
        for d in range(4):
            i = 8*q + 2*d
            a(f"v_lshlrev_b32 v{T0+5}, 16, v{xr+d}")
            a(f"v_and_b32 v{T0+6}, 0xffff0000, v{xr+d}")
            a(f"v_fmac_f32 v{T0+5}, v{ACC+i}, v{TM+24+i}")
            a(f"v_fmac_f32 v{T0+6}, v{ACC+i+1}, v{TM+24+i+1}")
            a(f"v_cvt_pk_bf16_f32 v{xr+d}, v{T0+5}, v{T0+6}")
        a(f"buffer_store_dwordx4 v[{xr}:{xr+3}], v{T0+7}, s[36:39], s57 offen offset:{32*q}")
    a("""
    K4_end:
    s_endpgm
    """)
    return a
```

```python
import sys
from common import *
import k1, k2, k3, k4
def build(kernels, path):
    hdr = open('standalone__mm_dit__diffusion.s.ref').read().split("\n")
    head = [l for l in hdr if l.startswith(";") and "@launch" not in l and "Override launch" not in l and "grid=ceil" not in l]
    out = "\n".join(head) + "\n"
    for (name, gen, grid, block, lds, vgpr, accum) in kernels:
        out += f"; @launch kernel={name} grid=({grid},1,1) block=({block},1,1) lds={lds}\n"
    out += '.amdgcn_target "amdgcn-amd-amdhsa--gfx950"\n.text\n'
    seen = set()
    for (name, gen, grid, block, lds, vgpr, accum) in kernels:
        if name in seen: continue
        seen.add(name)
        out += kernel_header(name) + gen().text()
    out += '.section .rodata,"a"\n'
    seen = set()
    for (name, gen, grid, block, lds, vgpr, accum) in kernels:
        if name in seen: continue
        seen.add(name)
        out += kernel_desc(name, vgpr, accum=accum)
    open(path, "w").write(out)
if __name__ == "__main__":
    K = [("k1_kernel", k1.gen_k1, k1.K1_GRID, 256, k1.K1_LDS, 96, None),
         ("k2_kernel", k2.gen_k2, k2.K2_GRID, 512, k2.K2_LDS, 248, None),
         ("k3_kernel", k3.gen_k3, k3.K3_GRID, 256, k3.K3_LDS, 208, None),
         ("k4_kernel", k4.gen_k4, k4.K4_GRID, 256, k4.K4_LDS, 224, None)]
    build(K, sys.argv[1])
```

```python
B, NI, NT_, D = 2, 1024, 32, 768
NTOK = NI + NT_
KA_XIMG, KA_XTXT, KA_C, KA_WQKV_I, KA_WQKV_T, KA_WO_I, KA_WO_T, KA_WMOD_I, KA_WMOD_T, KA_OUT, KA_DBG, KA_WS = [8*i for i in range(12)]
WS_MODP   = 0x0
WS_STATS  = 0x20000
WS_GATE   = 0x30000
WS_QKV    = 0x100000
WS_XN     = 0xC00000
WS_P      = 0x1000000
WS_PSTAT  = 0x1800000
WS_VT     = 0x1900000
WS_VT2    = 0x1d00000
WS_SIZE   = 268435456

class Asm:
    def __init__(self):
        self.lines = []
        self.uid = 0
    def __call__(self, s):
        for ln in s.strip("\n").split("\n"):
            self.lines.append("  " + ln.strip() if not ln.strip().endswith(":") else ln.strip())
    def label(self, name):
        self.lines.append(name + ":")
    def newlabel(self, p="L"):
        self.uid += 1
        return f"{p}_{self.uid}"
    def text(self):
        return "\n".join(self.lines) + "\n"

def srd(a, sreg, sptr, nbytes):
    a(f"s_mov_b32 s{sreg}, s{sptr}")
    a(f"s_mov_b32 s{sreg+1}, s{sptr+1}")
    a(f"s_mov_b32 s{sreg+2}, {nbytes}")
    a(f"s_mov_b32 s{sreg+3}, 0x00020000")

def kernel_header(name):
    return f""".globl {name}
.p2align 8
.type {name},@function
{name}:
"""

def kernel_desc(name, vgpr, sgpr=102, accum=None):
    if accum is None:
        accum = (vgpr + 3) // 4 * 4
    return f""".p2align 6
.amdhsa_kernel {name}
  .amdhsa_next_free_vgpr {vgpr}
  .amdhsa_next_free_sgpr {sgpr}
  .amdhsa_accum_offset {accum}
  .amdhsa_group_segment_fixed_size 0
  .amdhsa_kernarg_size 96
  .amdhsa_user_sgpr_count 2
  .amdhsa_user_sgpr_kernarg_segment_ptr 1
  .amdhsa_system_sgpr_workgroup_id_x 1
.end_amdhsa_kernel
"""

def wave_sum(a, v, tmp):
    a(f"s_nop 1")
    a(f"v_add_f32_dpp v{v}, v{v}, v{v} quad_perm:[1,0,3,2] row_mask:0xf bank_mask:0xf")
    a(f"s_nop 1")
    a(f"v_add_f32_dpp v{v}, v{v}, v{v} quad_perm:[2,3,0,1] row_mask:0xf bank_mask:0xf")
    a(f"s_nop 1")
    a(f"v_add_f32_dpp v{v}, v{v}, v{v} row_half_mirror row_mask:0xf bank_mask:0xf")
    a(f"s_nop 1")
    a(f"v_add_f32_dpp v{v}, v{v}, v{v} row_mirror row_mask:0xf bank_mask:0xf")
    a(f"v_mov_b32 v{tmp}, v{v}")
    a(f"s_nop 1")
    a(f"v_permlane16_swap_b32 v{v}, v{tmp}")
    a(f"s_nop 1")
    a(f"v_add_f32 v{v}, v{v}, v{tmp}")
    a(f"v_mov_b32 v{tmp}, v{v}")
    a(f"s_nop 1")
    a(f"v_permlane32_swap_b32 v{v}, v{tmp}")
    a(f"s_nop 1")
    a(f"v_add_f32 v{v}, v{v}, v{tmp}")

def srd_off(a, sreg, sptr, off, nbytes):
    a(f"s_add_u32 s{sreg}, s{sptr}, {off}")
    a(f"s_addc_u32 s{sreg+1}, s{sptr+1}, 0")
    a(f"s_mov_b32 s{sreg+2}, {nbytes}")
    a(f"s_mov_b32 s{sreg+3}, 0x00020000")
import struct
def f32bits(x):
    return struct.unpack('<I', struct.pack('<f', x))[0]

class Stamper:
    def __init__(self, a, on): self.a, self.on, self.n = a, on, 0
    def __call__(self):
        if not self.on or self.n >= 14: return
        if self.n == 0:
            self.a("s_memrealtime s[94:95]")
        self.a(f"s_memtime s[{66+2*self.n}:{67+2*self.n}]"); self.n += 1
    def out(self, vt, srd_ws, swave):
        if not self.on: return
        a = self.a
        a("s_waitcnt vmcnt(0)")
        self()
        a("s_memrealtime s[96:97]")
        a("s_waitcnt lgkmcnt(0)")
        a("s_lshl_b32 s3, s2, 3")
        a(f"s_add_u32 s3, s3, s{swave}")
        a("s_lshl_b32 s3, s3, 6")
        a("s_add_u32 s3, s3, 0x40000")
        a(f"v_mov_b32 v{vt}, 0")
        for i in range(self.n):
            a(f"v_mov_b32 v{vt+1}, s{66+2*i}")
            a(f"buffer_store_dword v{vt+1}, v{vt}, s[{srd_ws}:{srd_ws+3}], s3 offen offset:{4*i}")
        a(f"v_mov_b32 v{vt+1}, s94")
        a(f"buffer_store_dword v{vt+1}, v{vt}, s[{srd_ws}:{srd_ws+3}], s3 offen offset:56")
        a(f"v_mov_b32 v{vt+1}, s96")
        a(f"buffer_store_dword v{vt+1}, v{vt}, s[{srd_ws}:{srd_ws+3}], s3 offen offset:60")
PP = 2176
```

```python
from common import *
import struct
def f32bits(x):
    return struct.unpack('<I', struct.pack('<f', x))[0]


K1_NMOD = 216
K1_NSTAT = 264
K1_GRID = K1_NMOD + K1_NSTAT
K1_LDS = 12288

def gen_k1():
    a = Asm()
    a(f"""
    s_cmp_ge_u32 s2, {K1_GRID}
    s_cbranch_scc1 K1_end
    s_load_dwordx4 s[4:7], s[0:1], {KA_XIMG}
    s_load_dwordx2 s[8:9], s[0:1], {KA_C}
    s_load_dwordx4 s[12:15], s[0:1], {KA_WMOD_I}
    s_load_dwordx2 s[10:11], s[0:1], {KA_WS}
    v_and_b32 v1, 63, v0                          ; lane
    v_lshrrev_b32 v2, 6, v0                       ; wave
    s_waitcnt lgkmcnt(0)
    """)
    srd(a, 16, 10, WS_SIZE)
    a(f"""
    s_cmp_ge_u32 s2, {K1_NMOD}
    s_cbranch_scc1 K1_stats
    s_mov_b32 s20, 0
    s_mov_b32 s21, s2
    s_cmp_ge_u32 s21, 72
    s_cbranch_scc0 K1_m1
    s_sub_u32 s21, s21, 72
    s_add_u32 s20, s20, 1
    s_cmp_ge_u32 s21, 72
    s_cbranch_scc0 K1_m1
    s_sub_u32 s21, s21, 72
    s_add_u32 s20, s20, 1
    K1_m1:
    s_cmp_ge_u32 s21, 36
    s_cselect_b32 s24, s14, s12
    s_cselect_b32 s25, s15, s13
    s_cselect_b32 s22, 36, 0
    s_sub_u32 s22, s21, s22
    s_mov_b32 s26, {768*9216}
    s_mov_b32 s27, 0x00020000
    """)
    srd(a, 28, 8, 2*768*2)
    a(f"""
    s_lshl_b32 s23, s20, 8
    v_add_u32 v3, s23, v0
    v_lshlrev_b32 v3, 1, v3
    buffer_load_ushort v4, v3, s[28:31], 0 offen
    buffer_load_ushort v5, v3, s[28:31], 0 offen offset:1536
    ; W loads
    v_and_b32 v6, 15, v1                          ; colq
    v_lshrrev_b32 v7, 4, v1                       ; rsub
    v_lshl_add_u32 v8, v2, 6, v7
    s_movk_i32 s32, 9216
    v_mul_lo_u32 v9, v8, s32
    v_lshl_add_u32 v9, v6, 3, v9                  ; + colq*8
    s_lshl_b32 s33, s22, 7
    v_add_u32 v9, s33, v9
    s_mul_i32 s34, s20, {256*9216}
    """)
    for p in range(16):
        a(f"buffer_load_dwordx2 v[{32+2*p}:{33+2*p}], v9, s[24:27], s34 offen")
        if p < 15:
            a(f"s_add_u32 s34, s34, {4*9216}")
    a(f"""
    s_waitcnt vmcnt(16)
    """)
    for v in (4, 5):
        a(f"""
        v_lshlrev_b32 v{v}, 16, v{v}
        v_mul_f32 v10, 0xbfb8aa3b, v{v}           ; -x*log2e
        v_exp_f32 v10, v10
        s_nop 0
        v_add_f32 v10, 1.0, v10
        v_rcp_f32 v10, v10
        s_nop 0
        v_mul_f32 v{v}, v{v}, v10
        """)
    a(f"""
    v_cvt_pk_bf16_f32 v10, v4, v5
    v_lshlrev_b32 v4, 16, v10
    v_and_b32 v5, 0xffff0000, v10
    v_lshlrev_b32 v11, 3, v0
    ds_write_b64 v11, v[4:5]
    s_waitcnt lgkmcnt(0)
    s_barrier
    v_lshlrev_b32 v11, 3, v8
    """)
    for p in range(16):
        a(f"ds_read_b64 v[{64+2*p}:{65+2*p}], v11 offset:{32*p}")
    for i in range(8):
        a(f"v_mov_b32 v{16+i}, 0")
    for p in range(16):
        a(f"s_waitcnt vmcnt({15-p}) lgkmcnt({15-p})")
        w0, w1 = 32+2*p, 33+2*p
        c0, c1 = 64+2*p, 65+2*p
        a(f"""
        v_lshlrev_b32 v12, 16, v{w0}
        v_and_b32 v13, 0xffff0000, v{w0}
        v_lshlrev_b32 v14, 16, v{w1}
        v_and_b32 v15, 0xffff0000, v{w1}
        v_fmac_f32 v16, v12, v{c0}
        v_fmac_f32 v17, v13, v{c0}
        v_fmac_f32 v18, v14, v{c0}
        v_fmac_f32 v19, v15, v{c0}
        v_fmac_f32 v20, v12, v{c1}
        v_fmac_f32 v21, v13, v{c1}
        v_fmac_f32 v22, v14, v{c1}
        v_fmac_f32 v23, v15, v{c1}
        """)
    a(f"""
    v_lshl_add_u32 v11, v2, 2, v7                 ; w*4+rsub
    v_lshlrev_b32 v11, 9, v11                     ; *512
    v_lshl_add_u32 v11, v6, 5, v11                ; + colq*32
    ds_write_b128 v11, v[16:19] offset:2048
    ds_write_b128 v11, v[20:23] offset:2064
    s_waitcnt lgkmcnt(0)
    s_barrier
    v_cmp_gt_u32 vcc, 128, v0
    s_and_saveexec_b64 s[36:37], vcc
    s_cbranch_execz K1_end
    v_lshlrev_b32 v11, 2, v0
    """)
    for p in range(16):
        a(f"ds_read_b32 v{32+p}, v11 offset:{2048+512*p}")
    a("s_waitcnt lgkmcnt(0)")
    for st in (8, 4, 2, 1):
        for i in range(st):
            a(f"v_add_f32 v{32+i}, v{32+i}, v{32+i+st}")
    a(f"""
    v_lshrrev_b32 v12, 3, v0                      ; colq
    v_and_b32 v13, 3, v0                          ; c
    v_bfe_u32 v14, v0, 2, 1                       ; b
    v_lshl_add_u32 v12, v12, 2, v13               ; colq*4+c
    s_lshl_b32 s33, s21, 6
    v_add_u32 v12, s33, v12                       ; col 0..4607
    s_movk_i32 s32, 4608
    v_mad_u32_u24 v12, v14, s32, v12              ; b*4608 + col
    s_mul_i32 s33, s20, {2*4608}
    v_add_u32 v12, s33, v12
    v_lshlrev_b32 v12, 2, v12
    buffer_store_dword v32, v12, s[16:19], 0 offen offset:{WS_MODP}
    s_endpgm
    K1_stats:
    s_sub_u32 s20, s2, {K1_NMOD}
    s_lshl_b32 s20, s20, 3
    s_cmp_ge_u32 s20, 2048
    s_cselect_b32 s24, s6, s4
    s_cselect_b32 s25, s7, s5
    s_mov_b32 s33, {2048*1536}
    s_cselect_b32 s26, {64*1536}, s33
    s_cselect_b32 s21, 2048, 0
    s_mov_b32 s27, 0x00020000
    s_sub_u32 s21, s20, s21
    v_lshl_add_u32 v3, v2, 1, s21                 ; row0 = s21 + 2*w
    s_movk_i32 s32, 1536
    v_mul_lo_u32 v4, v3, s32
    v_mul_u32_u24 v5, 24, v1
    v_add_u32 v4, v4, v5
    buffer_load_dwordx3 v[8:10], v4, s[24:27], 0 offen
    buffer_load_dwordx3 v[12:14], v4, s[24:27], 0 offen offset:12
    buffer_load_dwordx3 v[16:18], v4, s[24:27], 0 offen offset:1536
    buffer_load_dwordx3 v[20:22], v4, s[24:27], 0 offen offset:1548
    """)
    for r in range(2):
        src = [8+8*r, 9+8*r, 10+8*r, 12+8*r, 13+8*r, 14+8*r]
        f = 32 + 16*r
        a(f"s_waitcnt vmcnt({2-2*r})")
        for i, sv in enumerate(src):
            a(f"v_lshlrev_b32 v{f+2*i}, 16, v{sv}")
            a(f"v_and_b32 v{f+2*i+1}, 0xffff0000, v{sv}")
        sm = 24 + 2*r
        a(f"v_add_f32 v{sm}, v{f}, v{f+1}")
        for i in range(2, 12):
            a(f"v_add_f32 v{sm}, v{sm}, v{f+i}")
        wave_sum(a, sm, 28)
        a(f"v_mul_f32 v{sm}, {hex(f32bits(1.0/768))}, v{sm}")
        for i in range(12):
            a(f"v_sub_f32 v{f+i}, v{f+i}, v{sm}")
        sq = 25 + 2*r
        a(f"v_mul_f32 v{sq}, v{f}, v{f}")
        for i in range(1, 12):
            a(f"v_fmac_f32 v{sq}, v{f+i}, v{f+i}")
        wave_sum(a, sq, 28)
        a(f"""
        v_mov_b32 v29, {hex(f32bits(1e-5))}
        v_fmac_f32 v29, {hex(f32bits(1.0/768))}, v{sq}
        v_rsq_f32 v{sq}, v29
        s_nop 0
        v_mul_f32 v{sm}, v{sm}, v{sq}
        v_sub_f32 v{sm}, 0, v{sm}
        """)
    a(f"""
    v_mul_u32_u24 v28, 12, v1                     ; e0 = 12*lane
    v_lshlrev_b32 v29, 5, v2
    """)
    for r in range(2):
        f = 32 + 16*r
        rs = 25 + 2*r
        for p in range(3):
            for e in range(4):
                a(f"v_mul_f32 v{f+4*p+e}, v{f+4*p+e}, v{rs}")
            a(f"v_cvt_pk_bf16_f32 v{64+2*p}, v{f+4*p}, v{f+4*p+1}")
            a(f"v_cvt_pk_bf16_f32 v{65+2*p}, v{f+4*p+2}, v{f+4*p+3}")
            a(f"""
            v_add_u32 v30, {4*p}, v28
            v_lshrrev_b32 v31, 3, v30
            v_bfe_u32 v30, v30, 2, 1
            v_lshlrev_b32 v31, 7, v31
            v_lshl_add_u32 v31, v30, 3, v31
            v_add_u32 v31, v31, v29
            ds_write_b64 v31, v[{64+2*p}:{65+2*p}] offset:{16*r}
            """)
    a(f"""
    s_waitcnt lgkmcnt(0)
    s_barrier
    v_lshlrev_b32 v3, 4, v0
    ds_read_b128 v[8:11], v3
    ds_read_b128 v[12:15], v3 offset:4096
    ds_read_b128 v[16:19], v3 offset:8192
    s_lshr_b32 s22, s20, 5
    s_mul_i32 s22, s22, {48*1024}
    s_and_b32 s23, s20, 31
    s_lshl_b32 s23, s23, 4
    s_add_u32 s22, s22, s23
    s_add_u32 s22, s22, {WS_XN}
    v_lshrrev_b32 v4, 4, v0
    v_bfe_u32 v5, v0, 3, 1                        ; hh
    v_and_b32 v6, 7, v0                           ; row
    v_lshlrev_b32 v4, 10, v4
    v_lshl_add_u32 v4, v5, 9, v4
    v_lshl_add_u32 v4, v6, 4, v4
    s_waitcnt lgkmcnt(0)
    buffer_store_dwordx4 v[8:11], v4, s[16:19], s22 offen
    s_add_u32 s22, s22, {16*1024}
    buffer_store_dwordx4 v[12:15], v4, s[16:19], s22 offen
    s_add_u32 s22, s22, {16*1024}
    buffer_store_dwordx4 v[16:19], v4, s[16:19], s22 offen
    K1_end:
    s_endpgm
    """)
    return a
```

```python
from common import *
from k3 import OpTrack

K2_GRID = 256
K2_NBUF = 4
PRE = 3
XD = 4
K2_STG = 20480
K2_LDS_MOD = K2_NBUF * K2_STG
K2_LDS = K2_LDS_MOD + 12288
NSTG = 12
DBG = set()
K2_VGPR = 176
K2_AGPR = 160

def gen_k2():
    a = Asm()
    st_ = Stamper(a, 'stamp' in DBG)
    st_()
    ot = OpTrack()
    BF = 0
    XR = 40
    AN = 104
    TMP = 120
    SCH = 124
    VD = 156
    VX = 161
    VL = 162
    VM = 164
    VLANE = 165
    VT = 166
    VMSK = 175
    a(f"""
    s_cmp_ge_u32 s2, {K2_GRID}
    s_cbranch_scc1 K2_end
    s_load_dwordx4 s[8:11], s[0:1], {KA_WQKV_I}
    s_load_dwordx2 s[12:13], s[0:1], {KA_WS}
    v_and_b32 v{VLANE}, 63, v0
    v_lshrrev_b32 v{VT}, 6, v0
    v_mov_b32 v{VT+1}, v0
    s_nop 0
    v_readfirstlane_b32 s40, v{VT}
    s_and_b32 s3, s2, 7                            ; j
    s_lshr_b32 s14, s2, 3                          ; i
    s_lshr_b32 s15, s3, 1                          ; rowgroup
    s_and_b32 s3, s3, 1                            ; colgroup
    s_and_b32 s41, s40, 1                          ; rg2
    s_lshr_b32 s42, s40, 1                         ; kh
    s_lshr_b32 s43, s14, 2
    s_lshl_b32 s3, s3, 3
    s_add_u32 s43, s43, s3
    s_and_b32 s44, s14, 3
    s_lshl_b32 s15, s15, 2
    s_add_u32 s44, s44, s15
    s_mov_b32 s45, 0                               ; is_txt
    s_cmp_eq_u32 s43, 15
    s_cbranch_scc0 K2_dec
    s_mov_b32 s45, 1
    s_mov_b32 s43, s44
    s_cmp_eq_u32 s43, 15
    s_cbranch_scc1 K2_end
    K2_dec:
    s_mul_i32 s46, s43, 160
    s_cmp_ge_u32 s43, 4
    s_cselect_b32 s47, 32, 0
    s_sub_u32 s46, s46, s47
    s_cmp_ge_u32 s43, 9
    s_cselect_b32 s47, 32, 0
    s_sub_u32 s46, s46, s47
    s_cmp_ge_u32 s43, 14
    s_cselect_b32 s47, 32, 0
    s_sub_u32 s46, s46, s47                        ; C0 (elements)
    s_lshl_b32 s55, s46, 1                         ; C0*2 bytes
    s_mul_i32 s54, s40, 320                        ; 5*wave*64
    s_mul_i32 s56, s40, 5120
    """)
    for i in range(5):
        a(f"""
        v_add_u32 v{VT+2}, s54, v{VLANE}
        v_add_u32 v{VT+2}, {64*i}, v{VT+2}           ; idx
        v_mul_u32_u24 v{VT+3}, 3277, v{VT+2}
        v_lshrrev_b32 v{VT+3}, 16, v{VT+3}           ; row
        v_mul_u32_u24 v{VT+4}, 20, v{VT+3}
        v_sub_u32 v{VT+4}, v{VT+2}, v{VT+4}          ; slot
        v_mul_u32_u24 v{VT+3}, 4608, v{VT+3}
        v_lshl_add_u32 v{VT+3}, v{VT+4}, 4, v{VT+3}
        v_add_u32 v{VD+i}, s55, v{VT+3}
        """)
    a(f"""
    v_lshlrev_b32 v{VX}, 4, v{VLANE}
    v_mov_b32 v{VMSK}, 0xffff0000
    s_waitcnt lgkmcnt(0)
    """)
    st_()
    srd(a, 24, 12, WS_QKV)
    srd_off(a, 28, 12, WS_QKV, 2*1056*2304*2)
    a(f"""
    s_add_u32 s16, s12, {WS_XN}
    s_addc_u32 s17, s13, 0
    s_mov_b32 s18, {66*48*1024}
    s_mov_b32 s19, 0x00020000
    s_cmp_eq_u32 s45, 1
    s_cselect_b32 s20, s10, s8
    s_cselect_b32 s21, s11, s9
    s_mov_b32 s22, {768*4608}
    s_mov_b32 s23, 0x00020000
    s_cbranch_scc1 K2_txt
    s_lshl_b32 s48, s44, 2
    s_lshl_b32 s47, s41, 1
    s_add_u32 s48, s48, s47
    s_lshr_b32 s50, s44, 3                         ; batch
    s_add_u32 s51, s48, s42
    s_add_u32 s51, s51, s50
    s_lshl_b32 s51, s51, 5
    s_mov_b32 s52, 1                               ; valid
    s_mov_b32 s53, 0
    s_branch K2_dec2
    K2_txt:
    s_add_u32 s48, s41, 64
    s_mov_b32 s50, s41
    s_mul_i32 s51, s50, 1056
    s_add_u32 s51, s51, 1024
    s_cmp_eq_u32 s42, 0
    s_cselect_b32 s52, 1, 0
    s_movk_i32 s53, 2304
    K2_dec2:
    s_mul_i32 s63, s48, 48
    s_lshl_b32 s64, s42, 1
    s_add_u32 s63, s63, s64
    s_lshl_b32 s63, s63, 10
    """)
    def issue_x_l(stage):
        xr = XR + 16*(stage % XD)
        ot.add(("x", stage), 4)
        return [f"s_add_u32 s64, s63, {stage*4096}",
                f"s_add_u32 s65, s63, {stage*4096 + 48*1024}",
                f"buffer_load_dwordx4 v[{xr}:{xr+3}], v{VX}, s[16:19], s64 offen",
                f"buffer_load_dwordx4 v[{xr+4}:{xr+7}], v{VX}, s[16:19], s65 offen",
                f"buffer_load_dwordx4 v[{xr+8}:{xr+11}], v{VX}, s[16:19], s64 offen offset:1024",
                f"buffer_load_dwordx4 v[{xr+12}:{xr+15}], v{VX}, s[16:19], s65 offen offset:1024"]
    def issue_l(stage):
        bi = stage % K2_NBUF
        out = [f"s_mov_b32 s38, {stage*64*4608}"]
        for i in range(5):
            out.append(f"s_add_u32 m0, s56, {bi*K2_STG + i*1024}")
            out.append("s_nop 0")
            out.append(f"buffer_load_dwordx4 v{VD+i}, s[20:23], s38 offen lds")
        ot.add(("d", stage), 5)
        return out
    def emit(ls):
        for l in ls: a(l)
    emit(issue_l(0)); emit(issue_x_l(0))
    a(f"""
    v_lshrrev_b32 v{VT+2}, 7, v{VT+1}              ; b = t>>7
    v_and_b32 v{VT+3}, 127, v{VT+1}
    v_mul_u32_u24 v{VT+3}, 12, v{VT+3}             ; i = (t&127)*12
    v_mul_u32_u24 v{VT+4}, 4608, v{VT+2}
    v_add_u32 v{VT+4}, v{VT+4}, v{VT+3}
    v_add_u32 v{VT+4}, s53, v{VT+4}
    v_lshlrev_b32 v{VT+4}, 2, v{VT+4}
    s_mov_b32 s64, {2*4608*4}
    s_mov_b32 s65, {2*2*4608*4}
    """)
    MB = XR + 16
    MB = 120
    for sp in range(3):
        so = ["0", "s64", "s65"][sp]
        for h in range(3):
            r = MB + 12*sp + 4*h
            a(f"buffer_load_dwordx4 v[{r}:{r+3}], v{VT+4}, s[24:27], {so} offen offset:{16*h}")
            ot.add(("mod", 0))
    emit(issue_l(1)); emit(issue_x_l(1))
    a(f"""
    v_bfe_u32 v{VT+4}, v{VLANE}, 2, 2              ; r'
    v_lshrrev_b32 v{VT+5}, 5, v{VLANE}             ; hh
    v_lshl_add_u32 v{VT+4}, v{VT+5}, 3, v{VT+4}    ; hh*8 + r'
    s_lshl_b32 s64, s42, 5
    v_add_u32 v{VT+4}, s64, v{VT+4}                ; + kh*32
    v_mul_u32_u24 v{VL}, 320, v{VT+4}
    v_bfe_u32 v{VT+4}, v{VLANE}, 4, 1
    v_lshl_add_u32 v{VL}, v{VT+4}, 5, v{VL}
    v_and_b32 v{VT+4}, 3, v{VLANE}
    v_lshl_add_u32 v{VL}, v{VT+4}, 3, v{VL}
    v_add_u32 v{VL+1}, {2*K2_STG}, v{VL}
    s_mul_i32 s64, s50, 6144
    s_lshl_b32 s65, s42, 7
    s_add_u32 s64, s64, s65
    s_add_u32 s64, s64, {K2_LDS_MOD}
    v_lshlrev_b32 v{VM}, 5, v{VT+5}
    v_add_u32 v{VM}, s64, v{VM}
    """)
    st_()
    a(f"s_waitcnt vmcnt({ot.need({('mod',0)})})")
    st_()
    for e in range(12):
        a(f"v_add_f32 v{MB+e}, v{MB+e}, v{MB+12+e}")
        a(f"v_add_f32 v{MB+e}, v{MB+e}, v{MB+24+e}")
    for e in range(0, 12, 2):
        a(f"v_cvt_pk_bf16_f32 v{MB+12}, v{MB+e}, v{MB+e+1}")
        a(f"v_lshlrev_b32 v{MB+e}, 16, v{MB+12}")
        a(f"v_and_b32 v{MB+e+1}, 0xffff0000, v{MB+12}")
    a(f"""
    s_and_b32 s64, s40, 1
    s_cmp_eq_u32 s64, 0
    s_cbranch_scc1 K2_nosc
    """)
    for e in range(0, 12, 2):
        a(f"v_add_f32 v{MB+e}, 1.0, v{MB+e}")
        a(f"v_add_f32 v{MB+e+1}, 1.0, v{MB+e+1}")
        a(f"v_cvt_pk_bf16_f32 v{MB+12}, v{MB+e}, v{MB+e+1}")
        a(f"v_lshlrev_b32 v{MB+e}, 16, v{MB+12}")
        a(f"v_and_b32 v{MB+e+1}, 0xffff0000, v{MB+12}")
    a.label("K2_nosc")
    a(f"""
    v_mul_u32_u24 v{VT+4}, 1536, v{VT+2}
    v_add_u32 v{VT+4}, v{VT+4}, v{VT+3}
    v_lshlrev_b32 v{VT+4}, 2, v{VT+4}
    v_add_u32 v{VT+4}, {K2_LDS_MOD}, v{VT+4}
    ds_write_b128 v{VT+4}, v[{MB}:{MB+3}]
    ds_write_b128 v{VT+4}, v[{MB+4}:{MB+7}] offset:16
    ds_write_b128 v{VT+4}, v[{MB+8}:{MB+11}] offset:32
    """)
    for st in range(2, PRE):
        emit(issue_l(st)); emit(issue_x_l(st))
    def modreads(stage, sp):
        base = (64*stage + 16*sp)*4
        r = SCH + 16*sp
        return [f"ds_read_b128 v[{r}:{r+3}], v{VM} offset:{base}",
                f"ds_read_b128 v[{r+4}:{r+7}], v{VM} offset:{base+16}",
                f"ds_read_b128 v[{r+8}:{r+11}], v{VM} offset:{base+3072}",
                f"ds_read_b128 v[{r+12}:{r+15}], v{VM} offset:{base+3072+16}"]
    def trreads(stage, sp):
        bi = stage % K2_NBUF
        out = []
        for T in range(5):
            r = BF + 20*sp + 4*T
            off = (bi % 2)*K2_STG + (16*sp)*320 + 64*T
            out.append(f"ds_read_b64_tr_b16 v[{r}:{r+1}], v{VL+bi//2} offset:{off}")
            out.append(f"ds_read_b64_tr_b16 v[{r+2}:{r+3}], v{VL+bi//2} offset:{off+4*320}")
        return out
    def normalize(stage, sp):
        r = SCH + 16*sp
        out = []
        for u in range(2):
            xr = XR + 16*(stage % XD) + 8*sp + 4*u
            for d in range(4):
                t0, t1 = TMP + 2*(d & 1), TMP + 2*(d & 1) + 1
                if 'pk' in DBG:
                    out += [f"v_lshlrev_b32 v{t0}, 16, v{xr+d}",
                            f"v_and_b32 v{t1}, v{VMSK}, v{xr+d}",
                            f"v_pk_fma_f32 v[{t0}:{t1}], v[{t0}:{t1}], v[{r+8+2*d}:{r+8+2*d+1}], v[{r+2*d}:{r+2*d+1}]",
                            f"v_cvt_pk_bf16_f32 v{AN+8*sp+4*u+d}, v{t0}, v{t1}"]
                elif u == 1:
                    out += [f"v_lshlrev_b32 v{t0}, 16, v{xr+d}",
                            f"v_and_b32 v{t1}, v{VMSK}, v{xr+d}",
                            f"v_fmac_f32 v{r+2*d}, v{t0}, v{r+8+2*d}",
                            f"v_fmac_f32 v{r+2*d+1}, v{t1}, v{r+8+2*d+1}",
                            f"v_cvt_pk_bf16_f32 v{AN+8*sp+4*u+d}, v{r+2*d}, v{r+2*d+1}"]
                else:
                    out += [f"v_lshlrev_b32 v{t0}, 16, v{xr+d}",
                            f"v_and_b32 v{t1}, v{VMSK}, v{xr+d}",
                            f"v_fma_f32 v{t0}, v{t0}, v{r+8+2*d}, v{r+2*d}",
                            f"v_fma_f32 v{t1}, v{t1}, v{r+8+2*d+1}, v{r+2*d+1}",
                            f"v_cvt_pk_bf16_f32 v{AN+8*sp+4*u+d}, v{t0}, v{t1}"]
        return out
    def mfmas(sp, first):
        out = []
        for u in range(2):
            for T in range(5):
                ac = 80*u + 16*T
                out.append(f"v_mfma_f32_32x32x16_bf16 a[{ac}:{ac+15}], v[{BF+20*sp+4*T}:{BF+20*sp+4*T+3}], v[{AN+8*sp+4*u}:{AN+8*sp+4*u+3}], " + ("0" if first else f"a[{ac}:{ac+15}]"))
        return out
    def weave(ms, fs):
        n = len(ms)
        k = 0
        for i, m in enumerate(ms):
            a(m)
            hi = (len(fs) * (i + 1)) // n
            emit(fs[k:hi]); k = hi
    a("s_waitcnt lgkmcnt(0)")
    a(f"s_waitcnt vmcnt({ot.need({('d',0),('x',0)})})")
    a("s_barrier")
    st_()
    emit(modreads(0, 0)); emit(trreads(0, 0)); emit(modreads(0, 1))
    a("s_waitcnt lgkmcnt(14)")
    emit(normalize(0, 0))
    emit(trreads(0, 1))
    for stage in range(NSTG):
        a(f"; ---- stage {stage}")
        m0 = mfmas(0, stage == 0); m1 = mfmas(1, False)
        a("s_waitcnt lgkmcnt(10)")
        nxt = stage + 1 < NSTG
        f0 = []
        if nxt:
            f0 += [f"s_waitcnt vmcnt({ot.need({('d',stage+1),('x',stage+1)})})", "s_barrier"]
        n1 = normalize(stage, 1)
        iss = []
        if stage + PRE < NSTG:
            iss = issue_l(stage + PRE) + issue_x_l(stage + PRE)
        mix = []
        tot = len(n1) + len(iss)
        i1 = i2 = 0
        for t in range(tot):
            if i2 * len(n1) <= i1 * len(iss) and i2 < len(iss) or i1 >= len(n1):
                mix.append(iss[i2]); i2 += 1
            else:
                mix.append(n1[i1]); i1 += 1
        weave(m0, f0 + mix)
        if stage in (1, 2, 3, 7, 11): st_()
        if nxt:
            n0 = normalize(stage+1, 0)
            f1 = modreads(stage+1, 0) + trreads(stage+1, 0) + ["s_waitcnt lgkmcnt(10)"] + n0 + modreads(stage+1, 1)
            a("s_waitcnt lgkmcnt(0)")
            weave(m1, f1)
            emit(trreads(stage+1, 1))
        else:
            a("s_waitcnt lgkmcnt(0)")
            emit(m1)
    a(f"""
    s_nop 15
    s_nop 7
    s_barrier
    """)
    st_()
    a(f"""
    v_lshlrev_b32 v{VT+2}, 4, v{VLANE}
    s_mul_i32 s62, s40, 20480
    v_add_u32 v{VT+3}, s62, v{VT+2}
    s_xor_b32 s63, s40, 2
    s_mul_i32 s63, s63, 20480
    v_add_u32 v{VT+2}, s63, v{VT+2}
    s_cmp_eq_u32 s42, 0
    s_cbranch_scc0 K2_ep1
    """)
    for kh in range(2):
        if kh == 1: a.label("K2_ep1")
        send = 80*(1-kh); keep = 80*kh
        for i in range(20):
            a(f"ds_write_b128 v{VT+3}, a[{send+4*i}:{send+4*i+3}] offset:{1024*i}")
        a("s_waitcnt lgkmcnt(0)")
        a("s_barrier")
        for i in range(20):
            a(f"ds_read_b128 v[{4*i}:{4*i+3}], v{VT+2} offset:{1024*i}")
        lab = a.newlabel("K2_skip")
        a(f"""
        v_and_b32 v{VT+4}, 31, v{VLANE}
        v_add_u32 v{VT+4}, s51, v{VT+4}
        s_movk_i32 s62, 4608
        v_mul_lo_u32 v{VT+4}, v{VT+4}, s62
        v_lshrrev_b32 v{VT+5}, 5, v{VLANE}
        v_lshl_add_u32 v{VT+4}, v{VT+5}, 4, v{VT+4}
        s_cmp_eq_u32 s52, 0
        s_cbranch_scc1 {lab}
        """)
        for p in range(10):
            r = 8*p
            o = 96 + 4*(p % 4)
            a(f"s_waitcnt lgkmcnt({min(15, 18-2*p)})")
            for i in range(8):
                a(f"v_accvgpr_read_b32 v{112+i}, a{keep+8*p+i}")
            for i in range(8):
                a(f"v_add_f32 v{r+i}, v{r+i}, v{112+i}")
            a(f"""
            v_cvt_pk_bf16_f32 v{o}, v{r}, v{r+1}
            v_cvt_pk_bf16_f32 v{o+1}, v{r+2}, v{r+3}
            v_cvt_pk_bf16_f32 v{o+2}, v{r+4}, v{r+5}
            v_cvt_pk_bf16_f32 v{o+3}, v{r+6}, v{r+7}
            s_nop 1
            v_permlane32_swap_b32 v{o}, v{o+2}
            v_permlane32_swap_b32 v{o+1}, v{o+3}
            buffer_store_dwordx4 v[{o}:{o+3}], v{VT+4}, s[28:31], s55 offen offset:{32*p}
            """)
        a.label(lab)
        if kh == 0: a("s_branch K2_done")
    a.label("K2_done")
    st_()
    st_.out(VT, 24, 40)
    a("""
    K2_end:
    s_endpgm
    """)
    return a
```

```python
from common import *
import math

K3_STG = 36864
K3_NBUF = 4
PRE = 3
K3_LDS = K3_STG * K3_NBUF
NSTG = 12
K3_GRID = 256
SCALE_L2E = (768 ** -0.5) * math.log2(math.e)
DBG = set()
WS_U = 0x2100000
WS_PST = 0x2000000

class OpTrack:
    def __init__(self): self.ops = []
    def add(self, tag, n=1): self.ops.extend([tag] * n)
    def need(self, tags):
        last = max(i for i, t in enumerate(self.ops) if t in tags)
        return min(63, len(self.ops) - 1 - last)

ACC = 0
FR = 80
def gen_k3():
    a = Asm()
    a.st_ = Stamper(a, 'stamp' in DBG)
    a.st_()
    a(f"""
    s_cmp_ge_u32 s2, {K3_GRID}
    s_cbranch_scc1 K3_end
    s_load_dwordx2 s[8:9], s[0:1], {KA_WO_I}
    s_load_dwordx2 s[12:13], s[0:1], {KA_WS}
    v_and_b32 v200, 63, v0                         ; lane
    v_lshrrev_b32 v201, 6, v0
    s_nop 0
    v_readfirstlane_b32 s40, v201                  ; wave
    s_and_b32 s57, s2, 7                           ; j
    s_lshr_b32 s58, s2, 3                          ; i
    s_cmp_ge_u32 s58, 28
    s_cbranch_scc1 K3_extra
    s_cmp_ge_u32 s58, 16
    s_cbranch_scc1 K3_Vimg
    s_lshr_b32 s43, s57, 2                         ; b
    s_bfe_u32 s42, s57, 0x10001
    s_lshl_b32 s42, s42, 2
    s_lshr_b32 s59, s58, 2
    s_add_u32 s42, s42, s59                        ; qt
    s_and_b32 s41, s57, 1
    s_lshl_b32 s41, s41, 2
    s_and_b32 s59, s58, 3
    s_add_u32 s41, s41, s59                        ; kt
    s_branch K3_Sgo
    K3_Vimg:
    s_sub_u32 s58, s58, 16
    s_lshr_b32 s44, s57, 1
    s_lshl_b32 s44, s44, 2
    s_and_b32 s59, s58, 3
    s_add_u32 s44, s44, s59
    s_lshr_b32 s43, s44, 3                         ; b
    s_and_b32 s44, s44, 7                          ; rt
    s_and_b32 s45, s57, 1
    s_mul_i32 s45, s45, 3
    s_lshr_b32 s59, s58, 2
    s_add_u32 s45, s45, s59                        ; ct
    s_lshl_b32 s44, s44, 7
    s_lshl_b32 s59, s40, 5
    s_add_u32 s44, s44, s59
    s_mov_b32 s42, 1
    s_branch K3_V
    K3_extra:
    s_lshl_b32 s57, s57, 2
    s_add_u32 s57, s57, s58
    s_sub_u32 s57, s57, 28                         ; e
    s_cmp_eq_u32 s57, 28
    s_cbranch_scc1 K3_gate
    s_cmp_ge_u32 s57, 28
    s_cbranch_scc1 K3_end
    s_cmp_ge_u32 s57, 22
    s_cbranch_scc1 K3_Vtxt
    s_cmp_ge_u32 s57, 11
    s_cselect_b32 s43, 1, 0
    s_mul_i32 s59, s43, 11
    s_sub_u32 s41, s57, s59
    s_movk_i32 s42, 8
    s_branch K3_Sgo
    K3_Vtxt:
    s_sub_u32 s45, s57, 22                         ; ct
    s_mov_b32 s43, s40
    s_movk_i32 s44, 1024
    s_cmp_lt_u32 s40, 2
    s_cselect_b32 s42, 1, 0
    s_branch K3_V
    K3_Sgo:
    s_waitcnt lgkmcnt(0)
    """)
    a.st_()
    srd_off(a, 16, 12, WS_QKV, 2*1056*2304*2)
    srd_off(a, 20, 12, WS_P, 2*1056*PP)
    srd_off(a, 24, 12, WS_PSTAT, 2*1056*8*8)
    a("""
    s_cmp_eq_u32 s42, 8
    s_cbranch_scc1 K3_S3
    s_cmp_eq_u32 s41, 7
    s_cbranch_scc1 K3_S5
    """)
    gen_s(a, 4, "S4", False)
    a.label("K3_S5")
    gen_s(a, 5, "S5", False)
    a.label("K3_S3")
    gen_s(a, 3, "S3", True)
    a.label("K3_V")
    gen_v(a)
    a.label("K3_gate")
    a("s_waitcnt lgkmcnt(0)")
    srd(a, 16, 12, WS_QKV)
    a(f"""
    v_lshrrev_b32 v1, 6, v0
    v_and_b32 v2, 63, v0
    v_mul_u32_u24 v2, 12, v2                       ; col0
    v_lshrrev_b32 v3, 1, v1                        ; stream
    v_and_b32 v4, 1, v1                            ; b
    v_mul_u32_u24 v5, 4608, v4
    v_mul_u32_u24 v6, 2304, v3
    v_add3_u32 v5, v5, v6, v2
    v_add_u32 v5, 1536, v5
    v_lshlrev_b32 v5, 2, v5
    s_mov_b32 s20, {2*4608*4}
    s_mov_b32 s21, {4*4608*4}
    """)
    for sp in range(3):
        so = ["0", "s20", "s21"][sp]
        for h in range(3):
            a(f"buffer_load_dwordx4 v[{8+12*sp+4*h}:{11+12*sp+4*h}], v5, s[16:19], {so} offen offset:{16*h}")
    a("s_waitcnt vmcnt(0)")
    for e in range(12):
        a(f"v_add_f32 v{8+e}, v{8+e}, v{20+e}")
        a(f"v_add_f32 v{8+e}, v{8+e}, v{32+e}")
    for e in range(0, 12, 2):
        a(f"v_cvt_pk_bf16_f32 v20, v{8+e}, v{9+e}")
        a(f"v_lshlrev_b32 v{8+e}, 16, v20")
        a(f"v_and_b32 v{9+e}, 0xffff0000, v20")
    a(f"""
    v_mul_u32_u24 v5, 768, v1
    v_add_u32 v5, v5, v2
    v_lshlrev_b32 v5, 2, v5
    s_mov_b32 s20, {WS_GATE}
    buffer_store_dwordx4 v[8:11], v5, s[16:19], s20 offen
    buffer_store_dwordx4 v[12:15], v5, s[16:19], s20 offen offset:16
    buffer_store_dwordx4 v[16:19], v5, s[16:19], s20 offen offset:32
    """)
    a("""
    K3_end:
    s_endpgm
    """)
    return a

def common_q_dma_setup(a, vq_even, vq_odd):
    a(f"""
    v_lshrrev_b32 v202, 3, v200                    ; row_in
    v_and_b32 v203, 7, v200                        ; slot
    v_lshrrev_b32 v204, 4, v200                    ; i>>4 (0..3)
    v_xor_b32 v205, v203, v204                     ; even j
    v_xor_b32 v206, 4, v205                        ; odd j
    v_mul_u32_u24 v202, 4608, v202
    v_lshl_add_u32 v{vq_even}, v205, 4, v202
    v_lshl_add_u32 v{vq_odd}, v206, 4, v202
    """)

def perm_row(a, dst, src, tmp):
    a(f"""
    v_and_b32 v{dst}, 3, v{src}
    v_bfe_u32 v{tmp}, v{src}, 2, 1
    v_lshl_add_u32 v{dst}, v{tmp}, 3, v{dst}
    v_bfe_u32 v{tmp}, v{src}, 3, 1
    v_lshl_add_u32 v{dst}, v{tmp}, 2, v{dst}
    v_bfe_u32 v{tmp}, v{src}, 4, 1
    v_lshl_add_u32 v{dst}, v{tmp}, 4, v{dst}
    """)

def pipeline(a, ot, issue, setbuf, reads, mfmas, nreads, first_stamp=True):
    a(f"s_waitcnt vmcnt({ot.need({('d',0)})})")
    a("s_barrier")
    a.st_()
    setbuf(0, 0)
    reads(0)
    NG = NSTG * 4
    iss = []
    for g in range(NG):
        st, s = g // 4, g % 4
        if g + 1 < NG:
            setbuf((g + 1) // 4, (g + 1) % 4)
            reads(g + 1)
            a(f"s_waitcnt lgkmcnt({nreads})")
        else:
            a("s_waitcnt lgkmcnt(0)")
        ms = mfmas(g)
        if s == 1 and st + 1 < NSTG:
            a(ms[0])
            a(f"s_waitcnt vmcnt({ot.need({('d',st+1)})})")
            a("s_barrier")
            if st in (0, 1, 2, 6, 10): a.st_()
            if st >= 1 and st + PRE < NSTG:
                iss = issue(st + PRE)
            ms = ms[1:]
        for m in ms:
            a(m)
            for l in iss[:4]: a(l)
            iss = iss[4:]
        if s == 3:
            for l in iss: a(l)
            iss = []

def gen_s(a, NTU, tag, isU):
    ot = OpTrack()
    VQE, VQO = 190, 191
    common_q_dma_setup(a, VQE, VQO)
    a(f"""
    s_mul_i32 s45, s43, 1056
    s_lshl_b32 s46, s42, 7
    s_add_u32 s46, s46, s45                        ; q row0
    s_mul_i32 s47, s41, {96 if isU else 128}
    s_add_u32 s47, s47, s45
    s_mul_i32 s48, s46, 4608
    s_mul_i32 s49, s47, 4608
    s_add_u32 s49, s49, 1536
    s_mul_i32 s50, s40, {0x20000000 if isU else 4*8*4608}
    s_add_u32 s48, s48, s50
    s_mul_i32 s50, s40, {NTU*8*4608}
    s_add_u32 s49, s49, s50
    s_lshl_b32 s51, s40, 12
    s_mul_i32 s52, s40, {NTU*1024}
    s_add_u32 s52, s52, 16384
    """)
    VKE, VKO = 192, 193
    if NTU % 2 == 0:
        a(f"v_mov_b32 v{VKE}, v{VQE}")
        a(f"v_mov_b32 v{VKO}, v{VQO}")
    else:
        a(f"""
        s_and_b32 s53, s40, 1
        s_cmp_eq_u32 s53, 1
        s_cselect_b64 s[54:55], -1, 0
        s_nop 1
        v_cndmask_b32 v{VKE}, v{VQE}, v{VQO}, s[54:55]
        v_cndmask_b32 v{VKO}, v{VQO}, v{VQE}, s[54:55]
        """)
    def issue(stage):
        bo = (stage % K3_NBUF) * K3_STG
        out = []
        for i in range(4):
            out += [f"s_add_u32 m0, s51, {bo + i*1024}",
                    f"s_add_u32 s56, s48, {stage*128 + i*8*4608}",
                    f"buffer_load_dwordx4 v{VQE if i % 2 == 0 else VQO}, s[16:19], s56 offen lds"]
        for i in range(NTU):
            out += [f"s_add_u32 m0, s52, {bo + i*1024}",
                    f"s_add_u32 s56, s49, {stage*128 + i*8*4608}",
                    f"buffer_load_dwordx4 v{VKE if i % 2 == 0 else VKO}, s[16:19], s56 offen lds"]
        ot.add(("d", stage), 4 + NTU)
        return out
    for st in range(2):
        for l in issue(st): a(l)
    VQA, VKA = 130, 134
    CQ, CK = 138, 142
    a(f"""
    v_and_b32 v202, 31, v200                       ; m / i
    v_lshrrev_b32 v203, 5, v200                    ; hh
    v_bfe_u32 v204, v202, 1, 3
    v_xor_b32 v204, v204, v203
    v_lshlrev_b32 v204, 4, v204
    v_lshl_add_u32 v204, v202, 7, v204
    s_lshl_b32 s53, s40, 12
    v_add_u32 v{VQA}, {"0" if isU else "s53"}, v204
    """)
    perm_row(a, 204, 202, 205)
    a(f"""
    v_bfe_u32 v205, v204, 1, 3
    v_xor_b32 v205, v205, v203
    v_lshlrev_b32 v205, 4, v205
    v_lshl_add_u32 v205, v204, 7, v205
    v_add_u32 v{VKA}, 16384, v205
    """)
    for s in range(1, 4):
        a(f"v_xor_b32 v{VQA+s}, {s << 5}, v{VQA}")
        a(f"v_xor_b32 v{VKA+s}, {s << 5}, v{VKA}")
    for st in range(2, PRE + 1):
        for l in issue(st): a(l)
    NF = NTU + 1
    def setbuf(stage, s):
        bo = (stage % K3_NBUF) * K3_STG
        a(f"v_add_u32 v{CQ}, {bo}, v{VQA+s}")
        a(f"v_add_u32 v{CK}, {bo}, v{VKA+s}")
    def reads(g):
        f = FR + 24 * (g & 1)
        a(f"ds_read_b128 v[{f}:{f+3}], v{CQ}")
        for T in range(NTU):
            a(f"ds_read_b128 v[{f+4+4*T}:{f+7+4*T}], v{CK} offset:{4096*T}")
    def mfmas(g):
        f = FR + 24 * (g & 1)
        out = []
        for T in range(NTU):
            c = "0" if g == 0 else f"v[{ACC+16*T}:{ACC+16*T+15}]"
            out.append(f"v_mfma_f32_32x32x16_bf16 v[{ACC+16*T}:{ACC+16*T+15}], v[{f+4+4*T}:{f+7+4*T}], v[{f}:{f+3}], {c}")
        return out
    pipeline(a, ot, issue, setbuf, reads, mfmas, NF)
    a.st_()
    CH = 24576
    PFA = 4 * CH
    NS = 2 * NTU
    NI_ = NS
    ou = OpTrack()
    def uissue(c):
        bo = (c % 4) * CH
        for i in range(NI_):
            a(f"s_add_u32 m0, s51, {bo + i*1024}")
            a(f"s_add_u32 s56, s48, {c*256 + i*4*4608}")
            a(f"buffer_load_dwordx4 v190, s[16:19], s56 offen lds")
        ou.add(("c", c), NI_)
    if isU:
      a(f"""
    s_barrier
    v_lshrrev_b32 v204, 4, v200
    v_and_b32 v205, 15, v200
    v_lshlrev_b32 v206, 2, v204
    v_xor_b32 v205, v205, v206
    v_mul_u32_u24 v204, 4608, v204
    v_lshl_add_u32 v190, v205, 4, v204
    s_mul_i32 s48, s47, 4608
    s_add_u32 s48, s48, 3072
    s_mul_i32 s50, s40, {NI_*4*4608}
    s_add_u32 s48, s48, s50
    s_mul_i32 s51, s40, {NI_*1024}
    """)
    if isU:
        uissue(0); uissue(1); uissue(2)
        gen_u(a, NTU, tag, ou, uissue, locals())
        return
    NE = 16 * NTU
    a("s_nop 15")
    a("s_nop 7")
    M = 150
    a(f"v_max3_f32 v{M}, v{ACC}, v{ACC+1}, v{ACC+2}")
    a(f"v_max3_f32 v{M+1}, v{ACC+3}, v{ACC+4}, v{ACC+5}")
    i = 6; k = 0
    while i + 1 < NE:
        a(f"v_max3_f32 v{M+k}, v{M+k}, v{ACC+i}, v{ACC+i+1}")
        i += 2; k ^= 1
    a(f"""
    v_max_f32 v{M}, v{M}, v{M+1}
    v_mov_b32 v{M+1}, v{M}
    s_nop 1
    v_permlane32_swap_b32 v{M}, v{M+1}
    s_nop 1
    v_max_f32 v{M}, v{M}, v{M+1}
    s_mov_b32 s53, {hex(f32bits(SCALE_L2E))}
    v_mul_f32 v{M}, s53, v{M}
    v_sub_f32 v{M+2}, 0, v{M}
    v_mov_b32 v{M+3}, s53
    """)
    for i in range(NE):
        a(f"v_fma_f32 v{ACC+i}, v{ACC+i}, v{M+3}, v{M+2}")
    for i in range(NE):
        a(f"v_exp_f32 v{ACC+i}, v{ACC+i}")
    a("s_nop 0")
    L = M + 4
    a(f"v_add_f32 v{L}, v{ACC}, v{ACC+1}")
    a(f"v_add_f32 v{L+1}, v{ACC+2}, v{ACC+3}")
    for i in range(4, NE, 2):
        a(f"v_add_f32 v{L}, v{L}, v{ACC+i}")
        a(f"v_add_f32 v{L+1}, v{L+1}, v{ACC+i+1}")
    a(f"""
    v_add_f32 v{L}, v{L}, v{L+1}
    v_mov_b32 v{L+1}, v{L}
    s_nop 1
    v_permlane32_swap_b32 v{L}, v{L+1}
    s_nop 1
    v_add_f32 v{L}, v{L}, v{L+1}
    v_mov_b32 v{M+1}, v{L}
    ; stats
    s_lshl_b32 s53, s42, 7
    s_lshl_b32 s54, s40, 5
    s_add_u32 s53, s53, s54
    s_add_u32 s55, s53, s45                        ; global
    v_add_u32 v204, s55, v202                      ; row
    v_lshlrev_b32 v206, 6, v204
    s_lshl_b32 s54, s41, 3
    """)
    PF = 84
    for T in range(NTU):
        for h in range(2):
            r = ACC + 16*T + 8*h
            o = PF + 4*(2*T + h)
            for d in range(4):
                a(f"v_cvt_pk_bf16_f32 v{o+d}, v{r+2*d}, v{r+2*d+1}")
    a(f"""
    v_mul_u32_u24 v205, {PP}, v204
    v_lshl_add_u32 v205, v203, 4, v205
    s_lshl_b32 s56, s41, 8
    """)
    for T in range(NTU):
        for h in range(2):
            o = PF + 4*(2*T + h)
            a(f"buffer_store_dwordx4 v[{o}:{o+3}], v205, s[20:23], s56 offen offset:{64*T + 32*h}")
    a(f"""
    v_cmp_gt_u32 vcc, 32, v200
    s_and_saveexec_b64 s[56:57], vcc
    buffer_store_dwordx2 v[{M}:{M+1}], v206, s[24:27], s54 offen
    s_mov_b64 exec, s[56:57]
    """)
    a.st_()
    a.st_.out(210, 16, 40) if False else None
    stamp_out(a)
    a("s_endpgm")

def stamp_out(a):
    st = a.st_
    if not st.on: return
    n0 = st.n
    srd(a, 32, 12, WS_QKV)
    st.out(210, 32, 40)
    st.n = n0

def gen_v(a):
    ot = OpTrack()
    VQE, VQO, VW = 190, 191, 192
    a.st_.n = 1
    a("s_waitcnt lgkmcnt(0)")
    a.st_()
    srd_off(a, 16, 12, WS_QKV, 2*1056*2304*2)
    a(f"""
    s_mov_b32 s20, s8
    s_mov_b32 s21, s9
    s_mov_b32 s22, {768*1536}
    s_mov_b32 s23, 0x00020000
    """)
    srd_off(a, 24, 12, WS_VT, 2*768*PP)
    common_q_dma_setup(a, VQE, VQO)
    a(f"""
    s_mul_i32 s46, s43, 1056
    s_add_u32 s47, s44, s46
    s_mul_i32 s48, s47, 4608
    s_add_u32 s48, s48, 3072
    s_lshl_b32 s51, s40, 12
    v_lshrrev_b32 v202, 4, v200
    v_and_b32 v203, 15, v200
    v_lshlrev_b32 v204, 2, v202
    v_xor_b32 v203, v203, v204
    v_mul_u32_u24 v202, 1536, v202
    v_lshl_add_u32 v{VW}, v203, 4, v202
    s_lshl_b32 s49, s45, 8
    s_mul_i32 s50, s40, {16*1536}
    s_add_u32 s49, s49, s50
    s_lshl_b32 s52, s40, 12
    s_add_u32 s52, s52, 16384
    """)
    def issue(stage):
        bo = (stage % K3_NBUF) * K3_STG
        out = []
        for i in range(4):
            out += [f"s_add_u32 m0, s51, {bo + i*1024}",
                    f"s_add_u32 s56, s48, {stage*128 + i*8*4608}",
                    f"buffer_load_dwordx4 v{VQE if i % 2 == 0 else VQO}, s[16:19], s56 offen lds"]
        for i in range(4):
            out += [f"s_add_u32 m0, s52, {bo + i*1024}",
                    f"s_add_u32 s56, s49, {stage*64*1536 + i*4*1536}",
                    f"buffer_load_dwordx4 v{VW}, s[20:23], s56 offen lds"]
        ot.add(("d", stage), 8)
        return out
    for st in range(2):
        for l in issue(st): a(l)
    VVA = 130; VWA = 134
    CV, CW = 138, 142
    a(f"""
    v_and_b32 v202, 31, v200
    v_lshrrev_b32 v203, 5, v200
    """)
    perm_row(a, 204, 202, 205)
    a(f"""
    v_bfe_u32 v205, v204, 1, 3
    v_xor_b32 v205, v205, v203
    v_lshlrev_b32 v205, 4, v205
    v_lshl_add_u32 v205, v204, 7, v205
    s_lshl_b32 s53, s40, 12
    v_add_u32 v{VVA}, s53, v205
    v_bfe_u32 v204, v200, 2, 2
    v_lshl_add_u32 v205, v203, 3, v204
    v_lshlrev_b32 v205, 8, v205
    v_lshl_add_u32 v205, v204, 6, v205
    v_bfe_u32 v206, v200, 4, 1
    v_lshl_add_u32 v205, v206, 5, v205
    v_and_b32 v206, 3, v200
    v_lshl_add_u32 v205, v206, 3, v205
    v_add_u32 v{VWA}, 16384, v205
    """)
    for s in range(1, 4):
        a(f"v_xor_b32 v{VVA+s}, {s << 5}, v{VVA}")
        a(f"v_xor_b32 v{VWA+s}, {s << 6}, v{VWA}")
    for st in range(2, PRE + 1):
        for l in issue(st): a(l)
    def setbuf(stage, s):
        bo = (stage % K3_NBUF) * K3_STG
        a(f"v_add_u32 v{CV}, {bo}, v{VVA+s}")
        if s == 0:
            for T in range(4):
                a(f"v_add_u32 v{CW+T}, {bo}, v{VWA+T}")
    def reads(g):
        s = g % 4
        f = FR + 24 * (g & 1)
        a(f"ds_read_b128 v[{f}:{f+3}], v{CV}")
        for T in range(4):
            a(f"ds_read_b64_tr_b16 v[{f+4+4*T}:{f+5+4*T}], v{CW+T} offset:{4096*s}")
            a(f"ds_read_b64_tr_b16 v[{f+6+4*T}:{f+7+4*T}], v{CW+T} offset:{4096*s+1024}")
    def mfmas(g):
        f = FR + 24 * (g & 1)
        out = []
        for T in range(4):
            c = "0" if g == 0 else f"v[{ACC+16*T}:{ACC+16*T+15}]"
            out.append(f"v_mfma_f32_32x32x16_bf16 v[{ACC+16*T}:{ACC+16*T+15}], v[{f}:{f+3}], v[{f+4+4*T}:{f+7+4*T}], {c}")
        return out
    pipeline(a, ot, issue, setbuf, reads, mfmas, 9)
    a.st_()
    a(f"""
    s_nop 15
    s_nop 7
    s_cmp_eq_u32 s42, 0
    s_cbranch_scc1 K3_end
    s_mul_i32 s54, s43, 768
    s_lshl_b32 s55, s45, 7
    s_add_u32 s54, s54, s55
    v_add_u32 v204, s54, v202
    v_mul_u32_u24 v205, {PP}, v204
    v_lshl_add_u32 v205, v203, 4, v205
    s_lshl_b32 s54, s44, 1
    """)
    for T in range(4):
        for h in range(2):
            r = ACC + 16*T + 8*h
            o = FR + 4 * ((2*T + h) % 8)
            a(f"""
            v_cvt_pk_bf16_f32 v{o}, v{r}, v{r+1}
            v_cvt_pk_bf16_f32 v{o+1}, v{r+2}, v{r+3}
            v_cvt_pk_bf16_f32 v{o+2}, v{r+4}, v{r+5}
            v_cvt_pk_bf16_f32 v{o+3}, v{r+6}, v{r+7}
            s_add_u32 s55, s54, {T*32*PP + 32*h}
            buffer_store_dwordx4 v[{o}:{o+3}], v205, s[24:27], s55 offen
            """)
    a.st_()
    stamp_out(a)
    a("s_endpgm")

def gen_u(a, NTU, tag, ou, uissue, L_):
    NE = 16 * NTU
    M = 150
    PF = 84
    CH = L_["CH"]; PFA = L_["PFA"]; NS = L_["NS"]; NI_ = L_["NI_"]
    a.label(f"K3_Usm{tag}")
    a("s_nop 15")
    a("s_nop 7")
    a(f"v_max3_f32 v{M}, v{ACC}, v{ACC+1}, v{ACC+2}")
    a(f"v_max3_f32 v{M+1}, v{ACC+3}, v{ACC+4}, v{ACC+5}")
    i = 6; k = 0
    while i + 1 < NE:
        a(f"v_max3_f32 v{M+k}, v{M+k}, v{ACC+i}, v{ACC+i+1}")
        i += 2; k ^= 1
    a(f"""
    v_max_f32 v{M}, v{M}, v{M+1}
    v_mov_b32 v{M+1}, v{M}
    s_nop 1
    v_permlane32_swap_b32 v{M}, v{M+1}
    s_nop 1
    v_max_f32 v{M}, v{M}, v{M+1}
    s_mov_b32 s53, {hex(f32bits(SCALE_L2E))}
    v_mul_f32 v{M}, s53, v{M}
    v_sub_f32 v{M+2}, 0, v{M}
    v_mov_b32 v{M+3}, s53
    v_lshlrev_b32 v204, 4, v200
    v_add_u32 v204, {PFA}, v204
    v_mov_b32 v{M+4}, 0
    """)
    L = M + 4
    def unit(T):
        for i in range(16):
            a(f"v_fma_f32 v{ACC+16*T+i}, v{ACC+16*T+i}, v{M+3}, v{M+2}")
        for i in range(16):
            a(f"v_exp_f32 v{ACC+16*T+i}, v{ACC+16*T+i}")
        a("s_nop 0")
        for i in range(16):
            a(f"v_add_f32 v{L}, v{L}, v{ACC+16*T+i}")
        for h in range(2):
            for d in range(4):
                a(f"v_cvt_pk_bf16_f32 v{PF+d}, v{ACC+16*T+8*h+2*d}, v{ACC+16*T+8*h+2*d+1}")
            a(f"ds_write_b128 v204, v[{PF}:{PF+3}] offset:{1024*(2*T+h)}")
            a("s_nop 1")
    for w in range(4):
        a(f"s_cmp_eq_u32 s40, {w}")
        a(f"s_cbranch_scc0 K3_Uw{w+1}{tag}")
        if w < NTU: unit(w)
        a(f"s_branch K3_Ul{tag}")
        a.label(f"K3_Uw{w+1}{tag}")
    a.label(f"K3_Ul{tag}")
    a(f"""
    v_lshlrev_b32 v205, 2, v200
    s_lshl_b32 s53, s40, 8
    s_add_u32 s53, s53, {PFA + 10240}
    v_add_u32 v206, s53, v205
    ds_write_b32 v206, v{L}
    """)
    a(f"""
    v_bfe_u32 v204, v200, 2, 2                     ; r'
    v_lshl_add_u32 v205, v203, 3, v204
    v_lshlrev_b32 v205, 8, v205
    v_xor_b32 v204, s40, v204
    v_lshl_add_u32 v205, v204, 6, v205
    v_bfe_u32 v206, v200, 4, 1
    v_lshl_add_u32 v205, v206, 5, v205
    v_and_b32 v206, 1, v200
    v_lshl_add_u32 v205, v206, 4, v205
    v_bfe_u32 v206, v200, 1, 1
    v_lshl_add_u32 v191, v206, 3, v205
    v_add_u32 v192, {CH}, v191
    v_add_u32 v193, {2*CH}, v191
    v_add_u32 v195, {3*CH}, v191
    s_mul_i32 s53, s43, 11
    s_add_u32 s53, s53, s41
    s_lshl_b32 s53, s53, 5
    v_add_u32 v204, s53, v202
    v_mul_u32_u24 v204, 1536, v204
    v_lshl_add_u32 v204, v203, 4, v204
    s_lshl_b32 s53, s40, 6
    v_add_u32 v194, s53, v204
    """)
    srd_off(a, 28, 12, WS_U, 2*11*32*1536)
    srd_off(a, 24, 12, WS_PST, 2*32*128)
    a(f"""
    s_waitcnt lgkmcnt(0)
    s_barrier
    v_lshlrev_b32 v204, 4, v200
    v_add_u32 v204, {PFA}, v204
    s_cmp_lg_u32 s40, 0
    s_cbranch_scc1 K3_Uns{tag}
    v_lshlrev_b32 v205, 2, v200
    v_add_u32 v206, {PFA + 10240}, v205
    ds_read_b32 v0, v206
    ds_read_b32 v1, v206 offset:256
    ds_read_b32 v2, v206 offset:512
    ds_read_b32 v3, v206 offset:768
    s_waitcnt lgkmcnt(0)
    v_add_f32 v0, v0, v1
    v_add_f32 v2, v2, v3
    v_add_f32 v0, v0, v2
    v_mov_b32 v1, v0
    s_nop 1
    v_permlane32_swap_b32 v0, v1
    s_nop 1
    v_add_f32 v{M+1}, v0, v1
    s_lshl_b32 s55, s43, 5
    v_add_u32 v206, s55, v202
    v_lshlrev_b32 v206, 7, v206
    s_lshl_b32 s54, s41, 3
    v_cmp_gt_u32 vcc, 32, v200
    s_and_saveexec_b64 s[56:57], vcc
    buffer_store_dwordx2 v[{M}:{M+1}], v206, s[24:27], s54 offen
    s_mov_b64 exec, s[56:57]
    K3_Uns{tag}:
    """)
    for i in range(NS):
        a(f"ds_read_b128 v[{PF+4*i}:{PF+4*i+3}], v204 offset:{1024*i}")
    VF = 0
    UA = 40
    def uepi(c):
        ua = UA + 16*(c & 1)
        out = []
        for h in range(2):
            o = 72 + 4*h
            for d in range(4):
                out.append(f"v_cvt_pk_bf16_f32 v{o+d}, v{ua+8*h+2*d}, v{ua+8*h+2*d+1}")
            out.append(f"buffer_store_dwordx4 v[{o}:{o+3}], v194, s[28:31], 0 offen offset:{256*c + 32*h}")
        ou.add(("s", c), 2)
        return out
    for c in range(6):
        a(f"s_waitcnt vmcnt({ou.need({('c',c)})})")
        a("s_barrier")
        va = [191, 192, 193, 195][c % 4]
        for s in range(NS):
            a(f"ds_read_b64_tr_b16 v[{VF+4*s}:{VF+4*s+1}], v{va} offset:{4096*s}")
            a(f"ds_read_b64_tr_b16 v[{VF+4*s+2}:{VF+4*s+3}], v{va} offset:{4096*s+1024}")
        if c + 3 < 6:
            uissue(c + 3)
        ua = UA + 16*(c & 1)
        ep = uepi(c - 1) if c >= 1 else []
        for s in range(NS):
            a(f"s_waitcnt lgkmcnt({min(15, 2*(NS-1-s))})")
            cc = "0" if s == 0 else f"v[{ua}:{ua+15}]"
            a(f"v_mfma_f32_32x32x16_bf16 v[{ua}:{ua+15}], v[{VF+4*s}:{VF+4*s+3}], v[{PF+4*s}:{PF+4*s+3}], {cc}")
            if s >= 2:
                for l in ep[:3]: a(l)
                ep = ep[3:]
        for l in ep: a(l)
    a("s_nop 15")
    a("s_nop 7")
    for l in uepi(5): a(l)
    stamp_out(a)
    a("s_endpgm")
```

```python
from common import *
from k3 import OpTrack, WS_U, WS_PST, perm_row
K4_STG = 24576
K4_NBUF = 5
PRE = 3
K4_LDS = K4_STG * K4_NBUF
K4_GRID = 256
NST = 17
DBG = set()

def gen_k4():
    a = Asm()
    st_ = Stamper(a, 'stamp' in DBG, 0x80000)
    st_()
    ot = OpTrack()
    ACC = 0; TM = 32
    FR = 96
    CF = 120
    XR = 128
    GT = 144
    VPE, VPO = 176, 177
    VPA, VVA = 178, 182
    CP, CV = 186, 190
    VLANE, VM_, VHH = 194, 195, 196
    T0 = 198
    a(f"""
    s_cmp_ge_u32 s2, {K4_GRID}
    s_cbranch_scc1 K4_end
    s_load_dwordx4 s[4:7], s[0:1], {KA_XIMG}
    s_load_dwordx2 s[8:9], s[0:1], {KA_OUT}
    s_load_dwordx2 s[10:11], s[0:1], {KA_WO_T}
    s_load_dwordx2 s[12:13], s[0:1], {KA_WS}
    v_and_b32 v{VLANE}, 63, v0
    v_lshrrev_b32 v{T0}, 6, v0
    v_mov_b32 v{T0+1}, v0
    s_nop 0
    v_readfirstlane_b32 s40, v{T0}
    s_and_b32 s57, s2, 7                           ; j
    s_lshr_b32 s58, s2, 3                          ; i
    s_lshr_b32 s44, s57, 2                         ; b
    s_cmp_ge_u32 s58, 24
    s_cbranch_scc1 K4_txt
    s_and_b32 s41, s40, 1                          ; mh
    s_lshr_b32 s42, s40, 1                         ; nh
    s_bfe_u32 s45, s57, 0x10001
    s_lshl_b32 s45, s45, 3
    s_and_b32 s59, s58, 7
    s_add_u32 s45, s45, s59                        ; mt
    s_and_b32 s46, s57, 1
    s_mul_i32 s46, s46, 3
    s_lshr_b32 s59, s58, 3
    s_add_u32 s46, s46, s59
    s_lshl_b32 s47, s45, 6
    v_lshrrev_b32 v{T0+2}, 3, v{VLANE}
    v_and_b32 v{T0+3}, 7, v{VLANE}
    v_lshrrev_b32 v{T0+4}, 4, v{VLANE}
    v_xor_b32 v{T0+5}, v{T0+3}, v{T0+4}
    v_xor_b32 v{T0+6}, 4, v{T0+5}
    v_mul_u32_u24 v{T0+2}, {PP}, v{T0+2}
    v_lshl_add_u32 v{VPE}, v{T0+5}, 4, v{T0+2}
    v_lshl_add_u32 v{VPO}, v{T0+6}, 4, v{T0+2}
    s_mul_i32 s48, s44, 1056
    s_add_u32 s48, s48, s47
    s_mul_i32 s49, s48, {PP}
    s_mul_i32 s50, s40, {16*PP}
    s_add_u32 s49, s49, s50
    s_mul_i32 s50, s44, 768
    s_lshl_b32 s51, s46, 7
    s_add_u32 s50, s50, s51
    s_mul_i32 s50, s50, {PP}
    s_mul_i32 s51, s40, {32*PP}
    s_add_u32 s50, s50, s51
    s_lshl_b32 s51, s40, 11
    s_lshl_b32 s52, s40, 12
    s_add_u32 s52, s52, 8192
    s_waitcnt lgkmcnt(0)
    """)
    st_()
    srd_off(a, 20, 12, WS_P, 2*1056*PP)
    srd_off(a, 28, 12, WS_VT, 2*768*PP)
    def issue(stage):
        bo = (stage % K4_NBUF) * K4_STG
        out = []
        for i in range(2):
            out += [f"s_add_u32 m0, s51, {bo + i*1024}",
                    f"s_add_u32 s56, s49, {stage*128 + i*8*PP}",
                    f"buffer_load_dwordx4 v{VPE if i % 2 == 0 else VPO}, s[20:23], s56 offen lds"]
        for i in range(4):
            out += [f"s_add_u32 m0, s52, {bo + i*1024}",
                    f"s_add_u32 s56, s50, {stage*128 + i*8*PP}",
                    f"buffer_load_dwordx4 v{VPE if i % 2 == 0 else VPO}, s[28:31], s56 offen lds"]
        ot.add(("d", stage), 6)
        return out
    def emit(ls):
        for l in ls: a(l)
    emit(issue(0)); emit(issue(1))
    srd(a, 16, 12, WS_QKV)
    srd_off(a, 24, 12, WS_PSTAT, 2*1056*64)
    srd(a, 32, 4, 2048*1536)
    srd(a, 36, 8, 2048*1536)
    a(f"""
    v_and_b32 v{VM_}, 31, v{VLANE}
    v_lshrrev_b32 v{VHH}, 5, v{VLANE}
    s_lshl_b32 s53, s41, 5
    s_add_u32 s53, s53, s48
    v_add_u32 v{T0+2}, s53, v{VM_}
    v_lshlrev_b32 v{T0+2}, 6, v{T0+2}
    """)
    PS = GT
    for i in range(4):
        a(f"buffer_load_dwordx4 v[{PS+4*i}:{PS+4*i+3}], v{T0+2}, s[24:27], 0 offen offset:{16*i}")
    ot.add(("ps", 0), 4)
    for st in range(2, PRE + 1):
        emit(issue(st))
    a(f"""
    s_lshl_b32 s53, s44, 10
    s_add_u32 s53, s53, s47
    s_lshl_b32 s54, s41, 5
    s_add_u32 s53, s53, s54
    v_add_u32 v{T0+7}, s53, v{VM_}
    v_mul_u32_u24 v{T0+7}, 1536, v{T0+7}
    v_lshl_add_u32 v{T0+7}, v{VHH}, 4, v{T0+7}
    s_lshl_b32 s57, s46, 8
    s_lshl_b32 s53, s42, 7
    s_add_u32 s57, s57, s53
    v_bfe_u32 v{T0+4}, v{VM_}, 1, 3
    v_xor_b32 v{T0+4}, v{T0+4}, v{VHH}
    v_lshlrev_b32 v{T0+4}, 4, v{T0+4}
    v_lshl_add_u32 v{T0+4}, v{VM_}, 7, v{T0+4}
    s_lshl_b32 s53, s41, 12
    v_add_u32 v{VPA}, s53, v{T0+4}
    """)
    perm_row(a, T0+5, VM_, T0+6)
    a(f"""
    v_bfe_u32 v{T0+6}, v{T0+5}, 1, 3
    v_xor_b32 v{T0+6}, v{T0+6}, v{VHH}
    v_lshlrev_b32 v{T0+6}, 4, v{T0+6}
    v_lshl_add_u32 v{T0+6}, v{T0+5}, 7, v{T0+6}
    s_lshl_b32 s53, s42, 13
    s_add_u32 s53, s53, 8192
    v_add_u32 v{VVA}, s53, v{T0+6}
    """)
    for s in range(1, 4):
        a(f"v_xor_b32 v{VPA+s}, {s << 5}, v{VPA}")
        a(f"v_xor_b32 v{VVA+s}, {s << 5}, v{VVA}")
    st_()
    a(f"s_waitcnt vmcnt({ot.need({('ps',0)})})")
    st_()
    a(f"v_max3_f32 v{T0+8}, v{PS}, v{PS+2}, v{PS+4}")
    a(f"v_max3_f32 v{T0+8}, v{T0+8}, v{PS+6}, v{PS+8}")
    a(f"v_max3_f32 v{T0+8}, v{T0+8}, v{PS+10}, v{PS+12}")
    a(f"v_max_f32 v{T0+8}, v{T0+8}, v{PS+14}")
    for t in range(8):
        a(f"v_sub_f32 v{CF+t}, v{PS+2*t}, v{T0+8}")
    for t in range(8):
        a(f"v_exp_f32 v{CF+t}, v{CF+t}")
    a("s_nop 0")
    a(f"v_mul_f32 v{T0+9}, v{CF}, v{PS+1}")
    for t in range(1, 8):
        a(f"v_fmac_f32 v{T0+9}, v{CF+t}, v{PS+2*t+1}")
    a(f"v_rcp_f32 v{T0+9}, v{T0+9}")
    a("s_nop 0")
    for t in range(8):
        a(f"v_mul_f32 v{CF+t}, v{CF+t}, v{T0+9}")
    steps = [(st, s) for st in range(16) for s in range(4)] + [(16, 0), (16, 1)]
    def setbuf(stage):
        bo = (stage % K4_NBUF) * K4_STG
        for s in range(4 if stage < 16 else 2):
            a(f"v_add_u32 v{CP+s}, {bo}, v{VPA+s}")
            a(f"v_add_u32 v{CV+s}, {bo}, v{VVA+s}")
    def reads(g):
        st, s = steps[g]
        f = FR + 12 * (g & 1)
        a(f"ds_read_b128 v[{f}:{f+3}], v{CP+s}")
        for T in range(2):
            a(f"ds_read_b128 v[{f+4+4*T}:{f+7+4*T}], v{CV+s} offset:{4096*T}")
    def tile_of(st): return min(st // 2, 7)
    def mfmas(g):
        st, s = steps[g]
        t = tile_of(st)
        first = (st == 2*t and s == 0)
        f = FR + 12 * (g & 1)
        tm = TM + 32 * (t & 1)
        return [f"v_mfma_f32_32x32x16_bf16 v[{tm+16*T}:{tm+16*T+15}], v[{f+4+4*T}:{f+7+4*T}], v[{f}:{f+3}], " + ("0" if first else f"v[{tm+16*T}:{tm+16*T+15}]") for T in range(2)]
    def scale(t):
        tm = TM + 32 * (t & 1)
        if t == 0:
            return [f"v_mul_f32 v{ACC+i}, v{tm+i}, v{CF+t}" for i in range(32)]
        return [f"v_fmac_f32 v{ACC+i}, v{tm+i}, v{CF+t}" for i in range(32)]
    def late_loads():
        out = []
        for q in range(4):
            out.append(f"buffer_load_dwordx4 v[{XR+4*q}:{XR+4*q+3}], v{T0+7}, s[32:35], s57 offen offset:{32*q}")
        ot.add(("x", 0), 4)
        out += [f"s_mul_i32 s53, s44, 3072", f"s_lshl_b32 s54, s57, 1", f"s_add_u32 s53, s53, s54", f"s_add_u32 s53, s53, {WS_GATE}",
                f"v_lshlrev_b32 v{T0+10}, 5, v{VHH}"]
        for q in range(4):
            out.append(f"buffer_load_dwordx4 v[{GT+8*q}:{GT+8*q+3}], v{T0+10}, s[16:19], s53 offen offset:{64*q}")
            out.append(f"buffer_load_dwordx4 v[{GT+8*q+4}:{GT+8*q+7}], v{T0+10}, s[16:19], s53 offen offset:{64*q+16}")
        ot.add(("x", 0), 8)
        return out
    a(f"s_waitcnt vmcnt({ot.need({('d',0)})})")
    a("s_barrier")
    st_()
    setbuf(0)
    reads(0)
    NG = len(steps)
    pend = []
    for g in range(NG):
        st, s = steps[g]
        nxt = steps[g+1] if g + 1 < NG else None
        fill = []
        if nxt is not None:
            if nxt[0] != st:
                a("s_waitcnt lgkmcnt(0)")
                a(f"s_waitcnt vmcnt({ot.need({('d',nxt[0])})})")
                a("s_barrier")
                if st in (0, 1, 2, 3, 7, 11, 15): st_()
                setbuf(nxt[0])
                reads(g + 1)
                if st + PRE + 1 < NST:
                    fill = issue(st + PRE + 1)
                if st == 13:
                    fill = late_loads()
            else:
                reads(g + 1)
                a("s_waitcnt lgkmcnt(3)")
        else:
            a("s_waitcnt lgkmcnt(0)")
        ms = mfmas(g)
        t = tile_of(st)
        can = not (st == 2*t and s < 2)
        for mi, m in enumerate(ms):
            a(m)
            h = (len(fill) + 1) // 2 if mi == 0 else len(fill)
            emit(fill[:h]); fill = fill[h:]
            if can and pend:
                emit(pend[:4]); pend = pend[4:]
        if nxt is not None and tile_of(nxt[0]) != t:
            assert not pend, (g, len(pend))
            pend = scale(t)
    st_()
    a("s_nop 15")
    a("s_nop 7")
    emit(pend)
    emit(scale(7))
    a("s_waitcnt vmcnt(0)")
    for q in range(4):
        xr = XR + 4*q
        for d in range(4):
            i = 8*q + 2*d
            a(f"v_lshlrev_b32 v{T0+5}, 16, v{xr+d}")
            a(f"v_and_b32 v{T0+6}, 0xffff0000, v{xr+d}")
            a(f"v_fmac_f32 v{T0+5}, v{ACC+i}, v{GT+i}")
            a(f"v_fmac_f32 v{T0+6}, v{ACC+i+1}, v{GT+i+1}")
            a(f"v_cvt_pk_bf16_f32 v{xr+d}, v{T0+5}, v{T0+6}")
        a(f"buffer_store_dwordx4 v[{xr}:{xr+3}], v{T0+7}, s[36:39], s57 offen offset:{32*q}")
    st_()
    st_.out(T0, 16, 40)
    a("s_endpgm")
    gen_txt(a, st_)
    a("""
    K4_end:
    s_endpgm
    """)
    return a

def gen_txt(a, st_):
    ot = OpTrack()
    a.label("K4_txt")
    WOP = 96
    AOFF = 768 * WOP
    APITCH = 1552
    a(f"""
    s_and_b32 s57, s57, 3
    s_lshl_b32 s57, s57, 3
    s_add_u32 s57, s57, s58
    s_sub_u32 s57, s57, 24                         ; e
    s_lshr_b32 s41, s57, 4                         ; rh
    s_and_b32 s42, s57, 15                         ; nt16
    s_waitcnt lgkmcnt(0)
    """)
    srd(a, 16, 12, WS_QKV)
    srd(a, 20, 10, 768*1536)
    srd_off(a, 24, 12, WS_PST, 2*32*128)
    srd_off(a, 28, 12, WS_U, 2*11*32*1536)
    srd(a, 32, 6, 64*1536)
    a(f"""
    s_add_u32 s36, s8, 3145728
    s_addc_u32 s37, s9, 0
    s_mov_b32 s38, {64*1536}
    s_mov_b32 s39, 0x00020000
    ; ---- Wo slice DMA: 768 rows x 6 slots = 4608 slots = 72 instrs (18 per wave): idx = (w*18+i)*64 + lane ; row = idx/6, slot = idx%6
    s_mul_i32 s45, s42, 96
    s_mul_i32 s46, s40, {18*64}
    v_add_u32 v2, s46, v194
    """)
    for i in range(18):
        a(f"""
        v_add_u32 v3, {64*i}, v2
        v_mul_u32_u24 v4, 10923, v3
        v_lshrrev_b32 v4, 16, v4
        v_mul_u32_u24 v5, 6, v4
        v_sub_u32 v5, v3, v5
        v_mul_u32_u24 v4, 1536, v4
        v_lshl_add_u32 v4, v5, 4, v4
        s_mul_i32 s47, s40, {18*1024}
        s_add_u32 m0, s47, {1024*i}
        s_nop 0
        buffer_load_dwordx4 v4, s[20:23], s45 offen lds
        """)
    ot.add(("w", 0), 18)
    a(f"""
    v_lshrrev_b32 v2, 4, v199                      ; row
    v_and_b32 v3, 15, v199                         ; seg
    s_lshl_b32 s46, s44, 5
    s_lshl_b32 s47, s41, 4
    s_add_u32 s46, s46, s47
    v_add_u32 v4, s46, v2
    v_lshlrev_b32 v4, 7, v4
    """)
    PS = 128
    for i in range(6):
        a(f"buffer_load_dwordx4 v[{PS+4*i}:{PS+4*i+3}], v4, s[24:27], 0 offen offset:{16*i}")
    ot.add(("ps", 0), 6)
    a(f"""
    s_mul_i32 s46, s44, 352
    s_lshl_b32 s47, s41, 4
    s_add_u32 s46, s46, s47                        ; b*11*32 + rh*16
    v_add_u32 v5, s46, v2
    v_mul_u32_u24 v5, 1536, v5
    v_lshl_add_u32 v5, v3, 4, v5
    """)
    UB = 32
    def uload(t):
        a(f"s_mov_b32 s47, {t*32*1536}")
        for c in range(6):
            r = UB + 24*(t & 1) + 4*c
            a(f"buffer_load_dwordx4 v[{r}:{r+3}], v5, s[28:31], s47 offen offset:{256*c}")
        ot.add(("u", t), 6)
    uload(0); uload(1)
    CF = 8
    NTL = 11
    a(f"s_waitcnt vmcnt({ot.need({('ps',0)})})")
    a(f"v_max3_f32 v6, v{PS}, v{PS+2}, v{PS+4}")
    for t_ in range(3, NTL, 2):
        a(f"v_max3_f32 v6, v6, v{PS+2*t_}, v{PS+2*t_+2}")
    for t_ in range(NTL):
        a(f"v_sub_f32 v{CF+t_}, v{PS+2*t_}, v6")
    for t_ in range(NTL):
        a(f"v_exp_f32 v{CF+t_}, v{CF+t_}")
    a("s_nop 0")
    a(f"v_mul_f32 v7, v{CF}, v{PS+1}")
    for t_ in range(1, NTL):
        a(f"v_fmac_f32 v7, v{CF+t_}, v{PS+2*t_+1}")
    a("v_rcp_f32 v7, v7")
    a("s_nop 0")
    for t_ in range(NTL):
        a(f"v_mul_f32 v{CF+t_}, v{CF+t_}, v7")
    AC = 80
    for t in range(NTL):
        a(f"s_waitcnt vmcnt({ot.need({('u',t)})})")
        for d in range(24):
            r = UB + 24*(t & 1) + d
            a(f"v_lshlrev_b32 v6, 16, v{r}")
            a(f"v_and_b32 v7, 0xffff0000, v{r}")
            if t == 0:
                a(f"v_mul_f32 v{AC+2*d}, v6, v{CF}")
                a(f"v_mul_f32 v{AC+2*d+1}, v7, v{CF}")
            else:
                a(f"v_fmac_f32 v{AC+2*d}, v6, v{CF+t}")
                a(f"v_fmac_f32 v{AC+2*d+1}, v7, v{CF+t}")
        if t + 2 < NTL:
            uload(t + 2)
    a(f"""
    v_mul_u32_u24 v6, {APITCH}, v2
    v_lshl_add_u32 v6, v3, 4, v6
    v_add_u32 v6, {AOFF}, v6
    """)
    for c in range(6):
        for d in range(4):
            a(f"v_cvt_pk_bf16_f32 v{UB+d}, v{AC+8*c+2*d}, v{AC+8*c+2*d+1}")
        a(f"ds_write_b128 v6, v[{UB}:{UB+3}] offset:{256*c}")
        a("s_nop 1")
    a(f"""
    v_and_b32 v2, 15, v194                         ; q
    v_lshrrev_b32 v3, 4, v194                      ; g
    s_lshl_b32 s46, s44, 5
    s_lshl_b32 s47, s41, 4
    s_add_u32 s46, s46, s47
    v_add_u32 v4, s46, v2
    v_mul_u32_u24 v4, 1536, v4
    v_lshl_add_u32 v4, v3, 3, v4                   ; + 4g*2 bytes
    s_mul_i32 s46, s44, 3072
    s_lshl_b32 s47, s45, 1
    s_add_u32 s46, s46, s47
    s_add_u32 s46, s46, {WS_GATE + 2*768*4}
    v_lshlrev_b32 v5, 4, v3
    """)
    for T in range(3):
        a(f"buffer_load_dwordx2 v[{8+2*T}:{9+2*T}], v4, s[32:35], s45 offen offset:{32*T}")
        a(f"buffer_load_dwordx4 v[{16+4*T}:{19+4*T}], v5, s[16:19], s46 offen offset:{64*T}")
    ot.add(("e", 0), 6)
    a(f"""
    s_waitcnt lgkmcnt(0)
    s_waitcnt vmcnt({ot.need({('w',0)})})
    s_barrier
    v_mul_u32_u24 v6, {APITCH}, v2
    v_lshl_add_u32 v6, v3, 4, v6
    s_mul_i32 s46, s40, 384
    s_add_u32 s46, s46, {AOFF}
    v_add_u32 v6, s46, v6
    v_bfe_u32 v7, v194, 2, 2
    v_lshl_add_u32 v7, v3, 3, v7
    s_mul_i32 s46, s40, 192
    v_add_u32 v7, s46, v7
    v_mul_u32_u24 v7, {WOP}, v7
    v_and_b32 v30, 3, v194
    v_lshl_add_u32 v7, v30, 3, v7
    """)
    DA = 32
    for s in range(6):
        f = 48 + 16*(s & 1)
        a(f"ds_read_b128 v[{f}:{f+3}], v6 offset:{64*s}")
        for T in range(3):
            a(f"ds_read_b64_tr_b16 v[{f+4+4*T}:{f+5+4*T}], v7 offset:{32*s*WOP + 32*T}")
            a(f"ds_read_b64_tr_b16 v[{f+6+4*T}:{f+7+4*T}], v7 offset:{32*s*WOP + 4*WOP + 32*T}")
        a("s_waitcnt lgkmcnt(0)")
        for T in range(3):
            c = "0" if s == 0 else f"v[{DA+4*T}:{DA+4*T+3}]"
            a(f"v_mfma_f32_16x16x32_bf16 v[{DA+4*T}:{DA+4*T+3}], v[{f+4+4*T}:{f+7+4*T}], v[{f}:{f+3}], {c}")
    a(f"""
    s_nop 15
    s_barrier
    v_lshlrev_b32 v30, 4, v194
    s_mul_i32 s46, s40, 3072
    v_add_u32 v31, s46, v30
    ds_write_b128 v31, v[{DA}:{DA+3}]
    ds_write_b128 v31, v[{DA+4}:{DA+7}] offset:1024
    ds_write_b128 v31, v[{DA+8}:{DA+11}] offset:2048
    s_waitcnt lgkmcnt(0)
    s_barrier
    s_cmp_lg_u32 s40, 0
    s_cbranch_scc1 K4_end
    """)
    for w in range(1, 4):
        for T in range(3):
            a(f"ds_read_b128 v[{48+12*(w-1)+4*T}:{51+12*(w-1)+4*T}], v30 offset:{3072*w + 1024*T}")
    a("s_waitcnt lgkmcnt(0) vmcnt(0)")
    for w in range(3):
        for i in range(12):
            a(f"v_add_f32 v{DA+i}, v{DA+i}, v{48+12*w+i}")
    for T in range(3):
        for d in range(2):
            i = 4*T + 2*d
            a(f"v_lshlrev_b32 v100, 16, v{8+2*T+d}")
            a(f"v_and_b32 v101, 0xffff0000, v{8+2*T+d}")
            a(f"v_fmac_f32 v100, v{DA+i}, v{16+i}")
            a(f"v_fmac_f32 v101, v{DA+i+1}, v{16+i+1}")
            a(f"v_cvt_pk_bf16_f32 v{8+2*T+d}, v100, v101")
        a(f"buffer_store_dwordx2 v[{8+2*T}:{9+2*T}], v4, s[36:39], s45 offen offset:{32*T}")
    a("s_endpgm")
```

```python
import sys
from common import *
import k1, k2, k3, k4
def build(kernels, path):
    hdr = open('standalone__mm_dit__diffusion.s.ref').read().split("\n")
    head = [l for l in hdr if l.startswith(";") and "@launch" not in l and "Override launch" not in l and "grid=ceil" not in l]
    out = "\n".join(head) + "\n"
    for (name, gen, grid, block, lds, vgpr, accum) in kernels:
        out += f"; @launch kernel={name} grid=({grid},1,1) block=({block},1,1) lds={lds}\n"
    out += '.amdgcn_target "amdgcn-amd-amdhsa--gfx950"\n.text\n'
    seen = set()
    for (name, gen, grid, block, lds, vgpr, accum) in kernels:
        if name in seen: continue
        seen.add(name)
        out += kernel_header(name) + gen().text() + f"{name}_END:\n"
    out += '.section .rodata,"a"\n'
    seen = set()
    for (name, gen, grid, block, lds, vgpr, accum) in kernels:
        if name in seen: continue
        seen.add(name)
        out += kernel_desc(name, vgpr, accum=accum)
    open(path, "w").write(out)
if __name__ == "__main__":
    K = [("k1_kernel", k1.gen_k1, k1.K1_GRID, 256, k1.K1_LDS, 96, None),
         ("k2_kernel", k2.gen_k2, k2.K2_GRID, 256, k2.K2_LDS, k2.K2_VGPR + k2.K2_AGPR, k2.K2_VGPR),
         ("k3_kernel", k3.gen_k3, k3.K3_GRID, 256, k3.K3_LDS, 216, None),
         ("k4_kernel", k4.gen_k4, k4.K4_GRID, 256, k4.K4_LDS, 216, None)]
    for f in sys.argv[2:]:
        k, fl = f.split(":")
        {"k2": k2, "k3": k3, "k4": k4}[k].DBG.add(fl)
    build(K, sys.argv[1])
```

```python
B, NI, NT_, D = 2, 1024, 32, 768
NTOK = NI + NT_
KA_XIMG, KA_XTXT, KA_C, KA_WQKV_I, KA_WQKV_T, KA_WO_I, KA_WO_T, KA_WMOD_I, KA_WMOD_T, KA_OUT, KA_DBG, KA_WS = [8*i for i in range(12)]
WS_MODP   = 0x0
WS_STATS  = 0x20000
WS_GATE   = 0x30000
WS_QKV    = 0x100000
WS_XN     = 0xC00000
WS_P      = 0x1000000
WS_PSTAT  = 0x1800000
WS_VT     = 0x1900000
WS_VT2    = 0x1d00000
WS_SIZE   = 268435456

class Asm:
    def __init__(self):
        self.lines = []
        self.uid = 0
    def __call__(self, s):
        for ln in s.strip("\n").split("\n"):
            self.lines.append("  " + ln.strip() if not ln.strip().endswith(":") else ln.strip())
    def label(self, name):
        self.lines.append(name + ":")
    def newlabel(self, p="L"):
        self.uid += 1
        return f"{p}_{self.uid}"
    def text(self):
        return "\n".join(self.lines) + "\n"

def srd(a, sreg, sptr, nbytes):
    a(f"s_mov_b32 s{sreg}, s{sptr}")
    a(f"s_mov_b32 s{sreg+1}, s{sptr+1}")
    a(f"s_mov_b32 s{sreg+2}, {nbytes}")
    a(f"s_mov_b32 s{sreg+3}, 0x00020000")

def kernel_header(name):
    return f""".globl {name}
.p2align 8
.type {name},@function
{name}:
"""

def kernel_desc(name, vgpr, sgpr=102, accum=None):
    if accum is None:
        accum = (vgpr + 3) // 4 * 4
    return f""".p2align 6
.amdhsa_kernel {name}
  .amdhsa_next_free_vgpr {vgpr}
  .amdhsa_next_free_sgpr {sgpr}
  .amdhsa_accum_offset {accum}
  .amdhsa_group_segment_fixed_size 0
  .amdhsa_kernarg_size 96
  .amdhsa_user_sgpr_count 2
  .amdhsa_user_sgpr_kernarg_segment_ptr 1
  .amdhsa_system_sgpr_workgroup_id_x 1
.end_amdhsa_kernel
"""

def wave_sum(a, v, tmp):
    a(f"s_nop 1")
    a(f"v_add_f32_dpp v{v}, v{v}, v{v} quad_perm:[1,0,3,2] row_mask:0xf bank_mask:0xf")
    a(f"s_nop 1")
    a(f"v_add_f32_dpp v{v}, v{v}, v{v} quad_perm:[2,3,0,1] row_mask:0xf bank_mask:0xf")
    a(f"s_nop 1")
    a(f"v_add_f32_dpp v{v}, v{v}, v{v} row_half_mirror row_mask:0xf bank_mask:0xf")
    a(f"s_nop 1")
    a(f"v_add_f32_dpp v{v}, v{v}, v{v} row_mirror row_mask:0xf bank_mask:0xf")
    a(f"v_mov_b32 v{tmp}, v{v}")
    a(f"s_nop 1")
    a(f"v_permlane16_swap_b32 v{v}, v{tmp}")
    a(f"s_nop 1")
    a(f"v_add_f32 v{v}, v{v}, v{tmp}")
    a(f"v_mov_b32 v{tmp}, v{v}")
    a(f"s_nop 1")
    a(f"v_permlane32_swap_b32 v{v}, v{tmp}")
    a(f"s_nop 1")
    a(f"v_add_f32 v{v}, v{v}, v{tmp}")

def srd_off(a, sreg, sptr, off, nbytes):
    a(f"s_add_u32 s{sreg}, s{sptr}, {off}")
    a(f"s_addc_u32 s{sreg+1}, s{sptr+1}, 0")
    a(f"s_mov_b32 s{sreg+2}, {nbytes}")
    a(f"s_mov_b32 s{sreg+3}, 0x00020000")
import struct
def f32bits(x):
    return struct.unpack('<I', struct.pack('<f', x))[0]

class Stamper:
    def __init__(self, a, on, base=0x40000): self.a, self.on, self.n, self.base = a, on, 0, base
    def __call__(self):
        if not self.on or self.n >= 14: return
        if self.n == 0:
            self.a("s_memrealtime s[94:95]")
        self.a(f"s_memtime s[{66+2*self.n}:{67+2*self.n}]"); self.n += 1
    def out(self, vt, srd_ws, swave):
        if not self.on: return
        a = self.a
        a("s_waitcnt vmcnt(0)")
        self()
        a("s_memrealtime s[96:97]")
        a("s_waitcnt lgkmcnt(0)")
        a("s_lshl_b32 s3, s2, 3")
        a(f"s_add_u32 s3, s3, s{swave}")
        a("s_lshl_b32 s3, s3, 6")
        a(f"s_add_u32 s3, s3, {self.base}")
        a(f"v_mov_b32 v{vt}, 0")
        for i in range(self.n):
            a(f"v_mov_b32 v{vt+1}, s{66+2*i}")
            a(f"buffer_store_dword v{vt+1}, v{vt}, s[{srd_ws}:{srd_ws+3}], s3 offen offset:{4*i}")
        a(f"v_mov_b32 v{vt+1}, s94")
        a(f"buffer_store_dword v{vt+1}, v{vt}, s[{srd_ws}:{srd_ws+3}], s3 offen offset:56")
        a(f"v_mov_b32 v{vt+1}, s96")
        a(f"buffer_store_dword v{vt+1}, v{vt}, s[{srd_ws}:{srd_ws+3}], s3 offen offset:60")
PP = 2176

ENABLE_PFC = False
def prefetch_code(a, start_label, end_label, vtmp, vtid, uniq, nwg=32):
    if not ENABLE_PFC: return
    lab = f"PFC_{uniq}"
    a(f"s_cmp_ge_u32 s2, {nwg}")
    a(f"s_cbranch_scc1 {lab}_skip")
    a(f"s_getpc_b64 s[98:99]")
    a.label(f"{lab}_pc")
    a(f"s_add_u32 s98, s98, {start_label}-{lab}_pc")
    a(f"s_addc_u32 s99, s99, 0")
    a(f"v_lshlrev_b32 v{vtmp}, 7, v{vtid}")
    a(f"v_min_u32 v{vtmp}, {end_label}-{start_label}-4, v{vtmp}")
    a(f"global_load_dword v{vtmp+1}, v{vtmp}, s[98:99]")
    a(f"v_lshlrev_b32 v{vtmp}, 7, v{vtid}")
    a(f"v_add_u32 v{vtmp}, 32768, v{vtmp}")
    a(f"v_min_u32 v{vtmp}, {end_label}-{start_label}-4, v{vtmp}")
    a(f"global_load_dword v{vtmp+1}, v{vtmp}, s[98:99]")
    a.label(f"{lab}_skip")

def prefetch_wo(a, ka_off, vtmp, vtid, uniq, sptr=None):
    lab = f"PFW_{uniq}"
    if sptr is None:
        a(f"s_load_dwordx2 s[98:99], s[0:1], {ka_off}")
        sptr = 98
    a(f"""
    s_lshr_b32 s100, s2, 3
    s_cmp_ge_u32 s100, 18
    s_cbranch_scc1 {lab}
    s_lshl_b32 s100, s100, 8
    v_add_u32 v{vtmp}, s100, v{vtid}
    v_mul_u32_u24 v{vtmp+1}, 10923, v{vtmp}
    v_lshrrev_b32 v{vtmp+1}, 16, v{vtmp+1}
    v_mul_u32_u24 v{vtmp+2}, 6, v{vtmp+1}
    v_sub_u32 v{vtmp+2}, v{vtmp}, v{vtmp+2}
    v_mul_u32_u24 v{vtmp+1}, 1536, v{vtmp+1}
    v_lshl_add_u32 v{vtmp+1}, v{vtmp+2}, 7, v{vtmp+1}
    s_and_b32 s100, s2, 1
    s_mul_i32 s100, s100, 768
    v_add_u32 v{vtmp+1}, s100, v{vtmp+1}
    s_waitcnt lgkmcnt(0)
    global_load_dword v{vtmp+2}, v{vtmp+1}, s[{sptr}:{sptr+1}]
    {lab}:
    """)
```

```python
from common import *
import struct
def f32bits(x):
    return struct.unpack('<I', struct.pack('<f', x))[0]


PFC = True
PFW = False
PFW2 = True
PFT = True
K1_NMOD = 216
K1_NSTAT = 264
K1_GRID = K1_NMOD + K1_NSTAT
K1_LDS = 12288


def touch_w(a, v):
    a(f"""
    s_lshr_b32 s46, s2, 3
    s_lshl_b32 s46, s46, 8
    v_add_u32 v{v}, s46, v0
    v_mul_u32_u24 v{v+1}, 52429, v{v}
    v_lshrrev_b32 v{v+1}, 20, v{v+1}
    v_mul_u32_u24 v{v+2}, 20, v{v+1}
    v_sub_u32 v{v+2}, v{v}, v{v+2}
    v_mul_u32_u24 v{v+1}, 4608, v{v+1}
    v_lshl_add_u32 v{v+1}, v{v+2}, 7, v{v+1}
    s_and_b32 s47, s2, 1
    s_lshl_b32 s47, s47, 11
    v_add_u32 v{v+1}, s47, v{v+1}
    global_load_dword v{v+2}, v{v+1}, s[44:45]
    """)

def gen_k1():
    a = Asm()
    a(f"""
    s_cmp_ge_u32 s2, {K1_GRID}
    s_cbranch_scc1 K1_end
    s_load_dwordx4 s[4:7], s[0:1], {KA_XIMG}
    s_load_dwordx2 s[8:9], s[0:1], {KA_C}
    s_load_dwordx4 s[12:15], s[0:1], {KA_WMOD_I}
    s_load_dwordx2 s[10:11], s[0:1], {KA_WS}
    s_load_dwordx2 s[44:45], s[0:1], {KA_WQKV_I}
    v_and_b32 v1, 63, v0                          ; lane
    v_lshrrev_b32 v2, 6, v0                       ; wave
    """)
    a("s_waitcnt lgkmcnt(0)")
    srd(a, 16, 10, WS_SIZE)
    a(f"""
    s_cmp_ge_u32 s2, {K1_NMOD}
    s_cbranch_scc1 K1_stats
    s_mov_b32 s20, 0
    s_mov_b32 s21, s2
    s_cmp_ge_u32 s21, 72
    s_cbranch_scc0 K1_m1
    s_sub_u32 s21, s21, 72
    s_add_u32 s20, s20, 1
    s_cmp_ge_u32 s21, 72
    s_cbranch_scc0 K1_m1
    s_sub_u32 s21, s21, 72
    s_add_u32 s20, s20, 1
    K1_m1:
    s_cmp_ge_u32 s21, 36
    s_cselect_b32 s24, s14, s12
    s_cselect_b32 s25, s15, s13
    s_cselect_b32 s22, 36, 0
    s_sub_u32 s22, s21, s22
    s_mov_b32 s26, {768*9216}
    s_mov_b32 s27, 0x00020000
    """)
    srd(a, 28, 8, 2*768*2)
    a(f"""
    s_lshl_b32 s23, s20, 8
    v_add_u32 v3, s23, v0
    v_lshlrev_b32 v3, 1, v3
    buffer_load_ushort v4, v3, s[28:31], 0 offen
    buffer_load_ushort v5, v3, s[28:31], 0 offen offset:1536
    ; W loads
    v_and_b32 v6, 15, v1                          ; colq
    v_lshrrev_b32 v7, 4, v1                       ; rsub
    v_lshl_add_u32 v8, v2, 6, v7
    s_movk_i32 s32, 9216
    v_mul_lo_u32 v9, v8, s32
    v_lshl_add_u32 v9, v6, 3, v9                  ; + colq*8
    s_lshl_b32 s33, s22, 7
    v_add_u32 v9, s33, v9
    s_mul_i32 s34, s20, {256*9216}
    """)
    for p in range(16):
        a(f"buffer_load_dwordx2 v[{32+2*p}:{33+2*p}], v9, s[24:27], s34 offen")
        if p < 15:
            a(f"s_add_u32 s34, s34, {4*9216}")
    if PFW2: touch_w(a, 96)
    X = 1 if PFW2 else 0
    a(f"""
    s_waitcnt vmcnt({16+X})
    """)
    for v in (4, 5):
        a(f"""
        v_lshlrev_b32 v{v}, 16, v{v}
        v_mul_f32 v10, 0xbfb8aa3b, v{v}           ; -x*log2e
        v_exp_f32 v10, v10
        s_nop 0
        v_add_f32 v10, 1.0, v10
        v_rcp_f32 v10, v10
        s_nop 0
        v_mul_f32 v{v}, v{v}, v10
        """)
    a(f"""
    v_cvt_pk_bf16_f32 v10, v4, v5
    v_lshlrev_b32 v4, 16, v10
    v_and_b32 v5, 0xffff0000, v10
    v_lshlrev_b32 v11, 3, v0
    ds_write_b64 v11, v[4:5]
    s_waitcnt lgkmcnt(0)
    s_barrier
    v_lshlrev_b32 v11, 3, v8
    """)
    for p in range(16):
        a(f"ds_read_b64 v[{64+2*p}:{65+2*p}], v11 offset:{32*p}")
    for i in range(8):
        a(f"v_mov_b32 v{16+i}, 0")
    for p in range(16):
        a(f"s_waitcnt vmcnt({15-p+X}) lgkmcnt({15-p})")
        w0, w1 = 32+2*p, 33+2*p
        c0, c1 = 64+2*p, 65+2*p
        a(f"""
        v_lshlrev_b32 v12, 16, v{w0}
        v_and_b32 v13, 0xffff0000, v{w0}
        v_lshlrev_b32 v14, 16, v{w1}
        v_and_b32 v15, 0xffff0000, v{w1}
        v_fmac_f32 v16, v12, v{c0}
        v_fmac_f32 v17, v13, v{c0}
        v_fmac_f32 v18, v14, v{c0}
        v_fmac_f32 v19, v15, v{c0}
        v_fmac_f32 v20, v12, v{c1}
        v_fmac_f32 v21, v13, v{c1}
        v_fmac_f32 v22, v14, v{c1}
        v_fmac_f32 v23, v15, v{c1}
        """)
    a(f"""
    v_lshl_add_u32 v11, v2, 2, v7                 ; w*4+rsub
    v_lshlrev_b32 v11, 9, v11                     ; *512
    v_lshl_add_u32 v11, v6, 5, v11                ; + colq*32
    ds_write_b128 v11, v[16:19] offset:2048
    ds_write_b128 v11, v[20:23] offset:2064
    s_waitcnt lgkmcnt(0)
    s_barrier
    v_cmp_gt_u32 vcc, 128, v0
    s_and_saveexec_b64 s[36:37], vcc
    s_cbranch_execz K1_end
    v_lshlrev_b32 v11, 2, v0
    """)
    for p in range(16):
        a(f"ds_read_b32 v{32+p}, v11 offset:{2048+512*p}")
    a("s_waitcnt lgkmcnt(0)")
    for st in (8, 4, 2, 1):
        for i in range(st):
            a(f"v_add_f32 v{32+i}, v{32+i}, v{32+i+st}")
    a(f"""
    v_lshrrev_b32 v12, 3, v0                      ; colq
    v_and_b32 v13, 3, v0                          ; c
    v_bfe_u32 v14, v0, 2, 1                       ; b
    v_lshl_add_u32 v12, v12, 2, v13               ; colq*4+c
    s_lshl_b32 s33, s21, 6
    v_add_u32 v12, s33, v12                       ; col 0..4607
    s_movk_i32 s32, 4608
    v_mad_u32_u24 v12, v14, s32, v12              ; b*4608 + col
    s_mul_i32 s33, s20, {2*4608}
    v_add_u32 v12, s33, v12
    v_lshlrev_b32 v12, 2, v12
    buffer_store_dword v32, v12, s[16:19], 0 offen offset:{WS_MODP}
    s_endpgm
    K1_stats:
    s_sub_u32 s20, s2, {K1_NMOD}
    s_lshl_b32 s20, s20, 3
    s_cmp_ge_u32 s20, 2048
    s_cselect_b32 s24, s6, s4
    s_cselect_b32 s25, s7, s5
    s_mov_b32 s33, {2048*1536}
    s_cselect_b32 s26, {64*1536}, s33
    s_cselect_b32 s21, 2048, 0
    s_mov_b32 s27, 0x00020000
    s_sub_u32 s21, s20, s21
    v_lshl_add_u32 v3, v2, 1, s21                 ; row0 = s21 + 2*w
    s_movk_i32 s32, 1536
    v_mul_lo_u32 v4, v3, s32
    v_mul_u32_u24 v5, 24, v1
    v_add_u32 v4, v4, v5
    buffer_load_dwordx3 v[8:10], v4, s[24:27], 0 offen
    buffer_load_dwordx3 v[12:14], v4, s[24:27], 0 offen offset:12
    buffer_load_dwordx3 v[16:18], v4, s[24:27], 0 offen offset:1536
    buffer_load_dwordx3 v[20:22], v4, s[24:27], 0 offen offset:1548
    """)
    if PFW2: touch_w(a, 96)
    for r in range(2):
        src = [8+8*r, 9+8*r, 10+8*r, 12+8*r, 13+8*r, 14+8*r]
        f = 32 + 16*r
        a(f"s_waitcnt vmcnt({2-2*r+X})")
        for i, sv in enumerate(src):
            a(f"v_lshlrev_b32 v{f+2*i}, 16, v{sv}")
            a(f"v_and_b32 v{f+2*i+1}, 0xffff0000, v{sv}")
        sm = 24 + 2*r
        a(f"v_add_f32 v{sm}, v{f}, v{f+1}")
        for i in range(2, 12):
            a(f"v_add_f32 v{sm}, v{sm}, v{f+i}")
        wave_sum(a, sm, 28)
        a(f"v_mul_f32 v{sm}, {hex(f32bits(1.0/768))}, v{sm}")
        for i in range(12):
            a(f"v_sub_f32 v{f+i}, v{f+i}, v{sm}")
        sq = 25 + 2*r
        a(f"v_mul_f32 v{sq}, v{f}, v{f}")
        for i in range(1, 12):
            a(f"v_fmac_f32 v{sq}, v{f+i}, v{f+i}")
        wave_sum(a, sq, 28)
        a(f"""
        v_mov_b32 v29, {hex(f32bits(1e-5))}
        v_fmac_f32 v29, {hex(f32bits(1.0/768))}, v{sq}
        v_rsq_f32 v{sq}, v29
        s_nop 0
        v_mul_f32 v{sm}, v{sm}, v{sq}
        v_sub_f32 v{sm}, 0, v{sm}
        """)
    a(f"""
    v_mul_u32_u24 v28, 12, v1                     ; e0 = 12*lane
    v_lshlrev_b32 v29, 5, v2
    """)
    for r in range(2):
        f = 32 + 16*r
        rs = 25 + 2*r
        for p in range(3):
            for e in range(4):
                a(f"v_mul_f32 v{f+4*p+e}, v{f+4*p+e}, v{rs}")
            a(f"v_cvt_pk_bf16_f32 v{64+2*p}, v{f+4*p}, v{f+4*p+1}")
            a(f"v_cvt_pk_bf16_f32 v{65+2*p}, v{f+4*p+2}, v{f+4*p+3}")
            a(f"""
            v_add_u32 v30, {4*p}, v28
            v_lshrrev_b32 v31, 3, v30
            v_bfe_u32 v30, v30, 2, 1
            v_lshlrev_b32 v31, 7, v31
            v_lshl_add_u32 v31, v30, 3, v31
            v_add_u32 v31, v31, v29
            ds_write_b64 v31, v[{64+2*p}:{65+2*p}] offset:{16*r}
            """)
    a(f"""
    s_waitcnt lgkmcnt(0)
    s_barrier
    v_lshlrev_b32 v3, 4, v0
    ds_read_b128 v[8:11], v3
    ds_read_b128 v[12:15], v3 offset:4096
    ds_read_b128 v[16:19], v3 offset:8192
    s_lshr_b32 s22, s20, 5
    s_mul_i32 s22, s22, {48*1024}
    s_and_b32 s23, s20, 31
    s_lshl_b32 s23, s23, 4
    s_add_u32 s22, s22, s23
    s_add_u32 s22, s22, {WS_XN}
    v_lshrrev_b32 v4, 4, v0
    v_bfe_u32 v5, v0, 3, 1                        ; hh
    v_and_b32 v6, 7, v0                           ; row
    v_lshlrev_b32 v4, 10, v4
    v_lshl_add_u32 v4, v5, 9, v4
    v_lshl_add_u32 v4, v6, 4, v4
    s_waitcnt lgkmcnt(0)
    buffer_store_dwordx4 v[8:11], v4, s[16:19], s22 offen
    s_add_u32 s22, s22, {16*1024}
    buffer_store_dwordx4 v[12:15], v4, s[16:19], s22 offen
    s_add_u32 s22, s22, {16*1024}
    buffer_store_dwordx4 v[16:19], v4, s[16:19], s22 offen
    K1_end:
    s_endpgm
    """)
    return a
```

```python
from common import *
from k3 import OpTrack

K2_GRID = 256
K2_NBUF = 4
PRE = 3
XD = 4
K2_STG = 20480
K2_LDS_MOD = K2_NBUF * K2_STG
K2_LDS = K2_LDS_MOD + 12288
NSTG = 12
DBG = set()
K2_VGPR = 256
K2_AGPR = 80
ACCA = 176

def gen_k2():
    a = Asm()
    st_ = Stamper(a, 'stamp' in DBG)
    st_()
    ot = OpTrack()
    BF = 0
    XR = 40
    AN = 104
    TMP = 120
    SCH = 124
    VD = 156
    VX = 161
    VL = 162
    VM = 164
    VLANE = 165
    VT = 166
    VMSK = 175
    a(f"""
    s_cmp_ge_u32 s2, {K2_GRID}
    s_cbranch_scc1 K2_end
    s_load_dwordx4 s[8:11], s[0:1], {KA_WQKV_I}
    s_load_dwordx2 s[12:13], s[0:1], {KA_WS}
    s_load_dwordx2 s[36:37], s[0:1], {KA_WO_I}
    v_and_b32 v{VLANE}, 63, v0
    v_lshrrev_b32 v{VT}, 6, v0
    v_mov_b32 v{VT+1}, v0
    s_nop 0
    v_readfirstlane_b32 s40, v{VT}
    s_and_b32 s3, s2, 7                            ; j
    s_lshr_b32 s14, s2, 3                          ; i
    s_lshr_b32 s15, s3, 1                          ; rowgroup
    s_and_b32 s3, s3, 1                            ; colgroup
    s_and_b32 s41, s40, 1                          ; rg2
    s_lshr_b32 s42, s40, 1                         ; kh
    s_lshr_b32 s43, s14, 2
    s_lshl_b32 s3, s3, 3
    s_add_u32 s43, s43, s3
    s_and_b32 s44, s14, 3
    s_lshl_b32 s15, s15, 2
    s_add_u32 s44, s44, s15
    s_mov_b32 s45, 0                               ; is_txt
    s_cmp_eq_u32 s43, 15
    s_cbranch_scc0 K2_dec
    s_mov_b32 s45, 1
    s_mov_b32 s43, s44
    s_cmp_eq_u32 s43, 15
    s_cbranch_scc1 K2_end
    K2_dec:
    s_mul_i32 s46, s43, 160
    s_cmp_ge_u32 s43, 4
    s_cselect_b32 s47, 32, 0
    s_sub_u32 s46, s46, s47
    s_cmp_ge_u32 s43, 9
    s_cselect_b32 s47, 32, 0
    s_sub_u32 s46, s46, s47
    s_cmp_ge_u32 s43, 14
    s_cselect_b32 s47, 32, 0
    s_sub_u32 s46, s46, s47                        ; C0 (elements)
    s_lshl_b32 s55, s46, 1                         ; C0*2 bytes
    s_mul_i32 s54, s40, 320                        ; 5*wave*64
    s_mul_i32 s56, s40, 5120
    """)
    for i in range(5):
        a(f"""
        v_add_u32 v{VT+2}, s54, v{VLANE}
        v_add_u32 v{VT+2}, {64*i}, v{VT+2}           ; idx
        v_mul_u32_u24 v{VT+3}, 3277, v{VT+2}
        v_lshrrev_b32 v{VT+3}, 16, v{VT+3}           ; row
        v_mul_u32_u24 v{VT+4}, 20, v{VT+3}
        v_sub_u32 v{VT+4}, v{VT+2}, v{VT+4}          ; slot
        v_mul_u32_u24 v{VT+3}, 4608, v{VT+3}
        v_lshl_add_u32 v{VT+3}, v{VT+4}, 4, v{VT+3}
        v_add_u32 v{VD+i}, s55, v{VT+3}
        """)
    a(f"""
    v_lshlrev_b32 v{VX}, 4, v{VLANE}
    v_mov_b32 v{VMSK}, 0xffff0000
    s_waitcnt lgkmcnt(0)
    """)
    st_()
    srd(a, 24, 12, WS_QKV)
    srd_off(a, 28, 12, WS_QKV, 2*1056*2304*2)
    a(f"""
    s_add_u32 s16, s12, {WS_XN}
    s_addc_u32 s17, s13, 0
    s_mov_b32 s18, {66*48*1024}
    s_mov_b32 s19, 0x00020000
    s_cmp_eq_u32 s45, 1
    s_cselect_b32 s20, s10, s8
    s_cselect_b32 s21, s11, s9
    s_mov_b32 s22, {768*4608}
    s_mov_b32 s23, 0x00020000
    s_cbranch_scc1 K2_txt
    s_lshl_b32 s48, s44, 2
    s_lshl_b32 s47, s41, 1
    s_add_u32 s48, s48, s47
    s_lshr_b32 s50, s44, 3                         ; batch
    s_add_u32 s51, s48, s42
    s_add_u32 s51, s51, s50
    s_lshl_b32 s51, s51, 5
    s_mov_b32 s52, 1                               ; valid
    s_mov_b32 s53, 0
    s_branch K2_dec2
    K2_txt:
    s_add_u32 s48, s41, 64
    s_mov_b32 s50, s41
    s_mul_i32 s51, s50, 1056
    s_add_u32 s51, s51, 1024
    s_cmp_eq_u32 s42, 0
    s_cselect_b32 s52, 1, 0
    s_movk_i32 s53, 2304
    K2_dec2:
    s_add_u32 s63, s48, s42
    s_mul_i32 s63, s63, 48
    s_lshl_b32 s64, s42, 1
    s_add_u32 s63, s63, s64
    s_lshl_b32 s63, s63, 10
    s_xor_b32 s62, s42, 1
    s_add_u32 s62, s62, s48
    s_mul_i32 s62, s62, 48
    s_add_u32 s62, s62, s64
    s_lshl_b32 s62, s62, 10
    """)
    def issue_x_l(stage):
        xr = XR + 16*(stage % XD)
        ot.add(("x", stage), 4)
        return [f"s_add_u32 s64, s63, {stage*4096}",
                f"s_add_u32 s65, s62, {stage*4096}",
                f"buffer_load_dwordx4 v[{xr}:{xr+3}], v{VX}, s[16:19], s64 offen",
                f"buffer_load_dwordx4 v[{xr+4}:{xr+7}], v{VX}, s[16:19], s65 offen",
                f"buffer_load_dwordx4 v[{xr+8}:{xr+11}], v{VX}, s[16:19], s64 offen offset:1024",
                f"buffer_load_dwordx4 v[{xr+12}:{xr+15}], v{VX}, s[16:19], s65 offen offset:1024"]
    def issue_l(stage):
        bi = stage % K2_NBUF
        out = [f"s_mov_b32 s38, {stage*64*4608}"]
        for i in range(5):
            out.append(f"s_add_u32 m0, s56, {bi*K2_STG + i*1024}")
            out.append("s_nop 0")
            out.append(f"buffer_load_dwordx4 v{VD+i}, s[20:23], s38 offen lds")
        ot.add(("d", stage), 5)
        return out
    def emit(ls):
        for l in ls: a(l)
    emit(issue_l(0)); emit(issue_x_l(0))
    a(f"""
    v_lshrrev_b32 v{VT+2}, 7, v{VT+1}              ; b = t>>7
    v_and_b32 v{VT+3}, 127, v{VT+1}
    v_mul_u32_u24 v{VT+3}, 12, v{VT+3}             ; i = (t&127)*12
    v_mul_u32_u24 v{VT+4}, 4608, v{VT+2}
    v_add_u32 v{VT+4}, v{VT+4}, v{VT+3}
    v_add_u32 v{VT+4}, s53, v{VT+4}
    v_lshlrev_b32 v{VT+4}, 2, v{VT+4}
    s_mov_b32 s64, {2*4608*4}
    s_mov_b32 s65, {2*2*4608*4}
    """)
    MB = XR + 16
    MB = 120
    for sp in range(3):
        so = ["0", "s64", "s65"][sp]
        for h in range(3):
            r = MB + 12*sp + 4*h
            a(f"buffer_load_dwordx4 v[{r}:{r+3}], v{VT+4}, s[24:27], {so} offen offset:{16*h}")
            ot.add(("mod", 0))
    emit(issue_l(1)); emit(issue_x_l(1))
    a(f"""
    v_bfe_u32 v{VT+4}, v{VLANE}, 2, 2              ; r'
    v_lshrrev_b32 v{VT+5}, 5, v{VLANE}             ; hh
    v_lshl_add_u32 v{VT+4}, v{VT+5}, 3, v{VT+4}    ; hh*8 + r'
    s_lshl_b32 s64, s42, 5
    v_add_u32 v{VT+4}, s64, v{VT+4}                ; + kh*32
    v_mul_u32_u24 v{VL}, 320, v{VT+4}
    v_bfe_u32 v{VT+4}, v{VLANE}, 4, 1
    v_lshl_add_u32 v{VL}, v{VT+4}, 5, v{VL}
    v_and_b32 v{VT+4}, 3, v{VLANE}
    v_lshl_add_u32 v{VL}, v{VT+4}, 3, v{VL}
    v_add_u32 v{VL+1}, {2*K2_STG}, v{VL}
    s_mul_i32 s64, s50, 6144
    s_lshl_b32 s65, s42, 7
    s_add_u32 s64, s64, s65
    s_add_u32 s64, s64, {K2_LDS_MOD}
    v_lshlrev_b32 v{VM}, 5, v{VT+5}
    v_add_u32 v{VM}, s64, v{VM}
    """)
    st_()
    a(f"s_waitcnt vmcnt({ot.need({('mod',0)})})")
    st_()
    for e in range(12):
        a(f"v_add_f32 v{MB+e}, v{MB+e}, v{MB+12+e}")
        a(f"v_add_f32 v{MB+e}, v{MB+e}, v{MB+24+e}")
    for e in range(0, 12, 2):
        a(f"v_cvt_pk_bf16_f32 v{MB+12}, v{MB+e}, v{MB+e+1}")
        a(f"v_lshlrev_b32 v{MB+e}, 16, v{MB+12}")
        a(f"v_and_b32 v{MB+e+1}, 0xffff0000, v{MB+12}")
    a(f"""
    s_and_b32 s64, s40, 1
    s_cmp_eq_u32 s64, 0
    s_cbranch_scc1 K2_nosc
    """)
    for e in range(0, 12, 2):
        a(f"v_add_f32 v{MB+e}, 1.0, v{MB+e}")
        a(f"v_add_f32 v{MB+e+1}, 1.0, v{MB+e+1}")
        a(f"v_cvt_pk_bf16_f32 v{MB+12}, v{MB+e}, v{MB+e+1}")
        a(f"v_lshlrev_b32 v{MB+e}, 16, v{MB+12}")
        a(f"v_and_b32 v{MB+e+1}, 0xffff0000, v{MB+12}")
    a.label("K2_nosc")
    a(f"""
    v_mul_u32_u24 v{VT+4}, 1536, v{VT+2}
    v_add_u32 v{VT+4}, v{VT+4}, v{VT+3}
    v_lshlrev_b32 v{VT+4}, 2, v{VT+4}
    v_add_u32 v{VT+4}, {K2_LDS_MOD}, v{VT+4}
    ds_write_b128 v{VT+4}, v[{MB}:{MB+3}]
    ds_write_b128 v{VT+4}, v[{MB+4}:{MB+7}] offset:16
    ds_write_b128 v{VT+4}, v[{MB+8}:{MB+11}] offset:32
    """)
    for st in range(2, PRE):
        emit(issue_l(st)); emit(issue_x_l(st))
    def modreads(stage, sp):
        base = (64*stage + 16*sp)*4
        r = SCH + 16*sp
        return [f"ds_read_b128 v[{r}:{r+3}], v{VM} offset:{base}",
                f"ds_read_b128 v[{r+4}:{r+7}], v{VM} offset:{base+16}",
                f"ds_read_b128 v[{r+8}:{r+11}], v{VM} offset:{base+3072}",
                f"ds_read_b128 v[{r+12}:{r+15}], v{VM} offset:{base+3072+16}"]
    def trreads(stage, sp):
        bi = stage % K2_NBUF
        out = []
        for T in range(5):
            r = BF + 20*sp + 4*T
            off = (bi % 2)*K2_STG + (16*sp)*320 + 64*T
            out.append(f"ds_read_b64_tr_b16 v[{r}:{r+1}], v{VL+bi//2} offset:{off}")
            out.append(f"ds_read_b64_tr_b16 v[{r+2}:{r+3}], v{VL+bi//2} offset:{off+4*320}")
        return out
    def normalize(stage, sp):
        r = SCH + 16*sp
        out = []
        for u in range(2):
            xr = XR + 16*(stage % XD) + 8*sp + 4*u
            for d in range(4):
                t0, t1 = TMP + 2*(d & 1), TMP + 2*(d & 1) + 1
                if 'pk' in DBG:
                    out += [f"v_lshlrev_b32 v{t0}, 16, v{xr+d}",
                            f"v_and_b32 v{t1}, v{VMSK}, v{xr+d}",
                            f"v_pk_fma_f32 v[{t0}:{t1}], v[{t0}:{t1}], v[{r+8+2*d}:{r+8+2*d+1}], v[{r+2*d}:{r+2*d+1}]",
                            f"v_cvt_pk_bf16_f32 v{AN+8*sp+4*u+d}, v{t0}, v{t1}"]
                elif u == 1:
                    out += [f"v_lshlrev_b32 v{t0}, 16, v{xr+d}",
                            f"v_and_b32 v{t1}, v{VMSK}, v{xr+d}",
                            f"v_fmac_f32 v{r+2*d}, v{t0}, v{r+8+2*d}",
                            f"v_fmac_f32 v{r+2*d+1}, v{t1}, v{r+8+2*d+1}",
                            f"v_cvt_pk_bf16_f32 v{AN+8*sp+4*u+d}, v{r+2*d}, v{r+2*d+1}"]
                else:
                    out += [f"v_lshlrev_b32 v{t0}, 16, v{xr+d}",
                            f"v_and_b32 v{t1}, v{VMSK}, v{xr+d}",
                            f"v_fma_f32 v{t0}, v{t0}, v{r+8+2*d}, v{r+2*d}",
                            f"v_fma_f32 v{t1}, v{t1}, v{r+8+2*d+1}, v{r+2*d+1}",
                            f"v_cvt_pk_bf16_f32 v{AN+8*sp+4*u+d}, v{t0}, v{t1}"]
        return out
    def mfmas(sp, first):
        out = []
        for u in range(2):
            for T in range(5):
                acc = f"v[{ACCA+16*T}:{ACCA+16*T+15}]" if u == 0 else f"a[{16*T}:{16*T+15}]"
                out.append(f"v_mfma_f32_32x32x16_bf16 {acc}, v[{BF+20*sp+4*T}:{BF+20*sp+4*T+3}], v[{AN+8*sp+4*u}:{AN+8*sp+4*u+3}], " + ("0" if first else acc))
        return out
    def weave(ms, fs):
        n = len(ms)
        k = 0
        for i, m in enumerate(ms):
            a(m)
            hi = (len(fs) * (i + 1)) // n
            emit(fs[k:hi]); k = hi
    a("s_waitcnt lgkmcnt(0)")
    a(f"s_waitcnt vmcnt({ot.need({('d',0),('x',0)})})")
    a("s_barrier")
    st_()
    emit(modreads(0, 0)); emit(trreads(0, 0)); emit(modreads(0, 1))
    a("s_waitcnt lgkmcnt(14)")
    emit(normalize(0, 0))
    emit(trreads(0, 1))
    for stage in range(NSTG):
        a(f"; ---- stage {stage}")
        m0 = mfmas(0, stage == 0); m1 = mfmas(1, False)
        a("s_waitcnt lgkmcnt(10)")
        nxt = stage + 1 < NSTG
        f0 = []
        if nxt:
            f0 += [f"s_waitcnt vmcnt({ot.need({('d',stage+1),('x',stage+1)})})", "s_barrier"]
        n1 = normalize(stage, 1)
        iss = []
        if stage + PRE < NSTG:
            iss = issue_l(stage + PRE) + issue_x_l(stage + PRE)
        mix = []
        tot = len(n1) + len(iss)
        i1 = i2 = 0
        for t in range(tot):
            if i2 * len(n1) <= i1 * len(iss) and i2 < len(iss) or i1 >= len(n1):
                mix.append(iss[i2]); i2 += 1
            else:
                mix.append(n1[i1]); i1 += 1
        weave(m0, f0 + mix)
        if stage in (1, 2, 3, 7, 11): st_()
        if nxt:
            n0 = normalize(stage+1, 0)
            f1 = modreads(stage+1, 0) + trreads(stage+1, 0) + ["s_waitcnt lgkmcnt(10)"] + n0 + modreads(stage+1, 1)
            a("s_waitcnt lgkmcnt(0)")
            weave(m1, f1)
            emit(trreads(stage+1, 1))
        else:
            a("s_waitcnt lgkmcnt(0)")
            emit(m1)
    a(f"""
    s_nop 15
    s_nop 7
    s_barrier
    """)
    st_()
    a(f"""
    v_lshlrev_b32 v{VT+2}, 4, v{VLANE}
    s_mul_i32 s62, s40, 20480
    v_add_u32 v{VT+3}, s62, v{VT+2}
    s_xor_b32 s63, s40, 2
    s_mul_i32 s63, s63, 20480
    v_add_u32 v{VT+2}, s63, v{VT+2}
    """)
    for i in range(20):
        a(f"ds_write_b128 v{VT+3}, a[{4*i}:{4*i+3}] offset:{1024*i}")
    prefetch_code(a, "k3_kernel", "k3_kernel_END", VT+6, VT+1, "k2")
    prefetch_wo(a, None, VT+6, VT+1, "k2", sptr=36)
    a("s_waitcnt lgkmcnt(0)")
    a("s_barrier")
    for i in range(20):
        a(f"ds_read_b128 v[{4*i}:{4*i+3}], v{VT+2} offset:{1024*i}")
    lab = a.newlabel("K2_skip")
    a(f"""
    v_and_b32 v{VT+4}, 31, v{VLANE}
    v_add_u32 v{VT+4}, s51, v{VT+4}
    s_movk_i32 s62, 4608
    v_mul_lo_u32 v{VT+4}, v{VT+4}, s62
    v_lshrrev_b32 v{VT+5}, 5, v{VLANE}
    v_lshl_add_u32 v{VT+4}, v{VT+5}, 4, v{VT+4}
    s_cmp_eq_u32 s52, 0
    s_cbranch_scc1 {lab}
    """)
    for p in range(10):
        r = 8*p
        o = 96 + 4*(p % 4)
        a(f"s_waitcnt lgkmcnt({min(15, 18-2*p)})")
        for i in range(8):
            a(f"v_add_f32 v{r+i}, v{r+i}, v{ACCA+8*p+i}")
        a(f"""
        v_cvt_pk_bf16_f32 v{o}, v{r}, v{r+1}
        v_cvt_pk_bf16_f32 v{o+1}, v{r+2}, v{r+3}
        v_cvt_pk_bf16_f32 v{o+2}, v{r+4}, v{r+5}
        v_cvt_pk_bf16_f32 v{o+3}, v{r+6}, v{r+7}
        s_nop 1
        v_permlane32_swap_b32 v{o}, v{o+2}
        v_permlane32_swap_b32 v{o+1}, v{o+3}
        buffer_store_dwordx4 v[{o}:{o+3}], v{VT+4}, s[28:31], s55 offen offset:{32*p}
        """)
    a.label(lab)
    a.label("K2_done")
    st_()
    st_.out(VT, 24, 40)
    a("""
    K2_end:
    s_endpgm
    """)
    return a
```

```python
from common import *
import math

K3_STG = 36864
K3_NBUF = 4
PRE = 3
K3_LDS = K3_STG * K3_NBUF
NSTG = 12
K3_GRID = 256
SCALE_L2E = (768 ** -0.5) * math.log2(math.e)
DBG = set()
WS_U = 0x2100000
WS_PST = 0x2000000

class OpTrack:
    def __init__(self): self.ops = []
    def add(self, tag, n=1): self.ops.extend([tag] * n)
    def need(self, tags):
        last = max(i for i, t in enumerate(self.ops) if t in tags)
        return min(63, len(self.ops) - 1 - last)

ACC = 0
FR = 80
def gen_k3():
    a = Asm()
    a.st_ = Stamper(a, 'stamp' in DBG, 0x60000)
    a.st_()
    a(f"""
    s_cmp_ge_u32 s2, {K3_GRID}
    s_cbranch_scc1 K3_end
    s_load_dwordx2 s[8:9], s[0:1], {KA_WO_I}
    s_load_dwordx2 s[12:13], s[0:1], {KA_WS}
    v_and_b32 v200, 63, v0                         ; lane
    v_lshrrev_b32 v201, 6, v0
    s_nop 0
    v_readfirstlane_b32 s40, v201                  ; wave
    s_and_b32 s57, s2, 7                           ; j
    s_lshr_b32 s58, s2, 3                          ; i
    s_cmp_ge_u32 s58, 28
    s_cbranch_scc1 K3_extra
    s_cmp_ge_u32 s58, 16
    s_cbranch_scc1 K3_Vimg
    s_lshr_b32 s43, s57, 2                         ; b
    s_bfe_u32 s42, s57, 0x10001
    s_lshl_b32 s42, s42, 2
    s_lshr_b32 s59, s58, 2
    s_add_u32 s42, s42, s59                        ; qt
    s_and_b32 s41, s57, 1
    s_lshl_b32 s41, s41, 2
    s_and_b32 s59, s58, 3
    s_add_u32 s41, s41, s59                        ; kt
    s_branch K3_Sgo
    K3_Vimg:
    s_sub_u32 s58, s58, 16
    s_lshr_b32 s44, s57, 1
    s_lshl_b32 s44, s44, 2
    s_and_b32 s59, s58, 3
    s_add_u32 s44, s44, s59
    s_lshr_b32 s43, s44, 3                         ; b
    s_and_b32 s44, s44, 7                          ; rt
    s_and_b32 s45, s57, 1
    s_mul_i32 s45, s45, 3
    s_lshr_b32 s59, s58, 2
    s_add_u32 s45, s45, s59                        ; ct
    s_lshl_b32 s44, s44, 7
    s_lshl_b32 s59, s40, 5
    s_add_u32 s44, s44, s59
    s_mov_b32 s42, 1
    s_branch K3_V
    K3_extra:
    s_lshl_b32 s57, s57, 2
    s_add_u32 s57, s57, s58
    s_sub_u32 s57, s57, 28                         ; e
    s_cmp_eq_u32 s57, 28
    s_cbranch_scc1 K3_gate
    s_cmp_ge_u32 s57, 28
    s_cbranch_scc1 K3_end
    s_cmp_ge_u32 s57, 22
    s_cbranch_scc1 K3_Vtxt
    s_cmp_ge_u32 s57, 11
    s_cselect_b32 s43, 1, 0
    s_mul_i32 s59, s43, 11
    s_sub_u32 s41, s57, s59
    s_movk_i32 s42, 8
    s_branch K3_Sgo
    K3_Vtxt:
    s_sub_u32 s45, s57, 22                         ; ct
    s_mov_b32 s43, s40
    s_movk_i32 s44, 1024
    s_cmp_lt_u32 s40, 2
    s_cselect_b32 s42, 1, 0
    s_branch K3_V
    K3_Sgo:
    s_waitcnt lgkmcnt(0)
    """)
    a.st_()
    srd_off(a, 16, 12, WS_QKV, 2*1056*2304*2)
    srd_off(a, 20, 12, WS_P, 2*1056*PP)
    srd_off(a, 24, 12, WS_PSTAT, 2*1056*8*8)
    a("""
    s_cmp_eq_u32 s42, 8
    s_cbranch_scc1 K3_S3
    s_cmp_eq_u32 s41, 7
    s_cbranch_scc1 K3_S5
    """)
    gen_s(a, 4, "S4", False)
    a.label("K3_S5")
    gen_s(a, 5, "S5", False)
    a.label("K3_S3")
    gen_s(a, 3, "S3", True)
    a.label("K3_V")
    gen_v(a)
    a.label("K3_gate")
    a("s_waitcnt lgkmcnt(0)")
    srd(a, 16, 12, WS_QKV)
    a(f"""
    v_lshrrev_b32 v1, 6, v0
    v_and_b32 v2, 63, v0
    v_mul_u32_u24 v2, 12, v2                       ; col0
    v_lshrrev_b32 v3, 1, v1                        ; stream
    v_and_b32 v4, 1, v1                            ; b
    v_mul_u32_u24 v5, 4608, v4
    v_mul_u32_u24 v6, 2304, v3
    v_add3_u32 v5, v5, v6, v2
    v_add_u32 v5, 1536, v5
    v_lshlrev_b32 v5, 2, v5
    s_mov_b32 s20, {2*4608*4}
    s_mov_b32 s21, {4*4608*4}
    """)
    for sp in range(3):
        so = ["0", "s20", "s21"][sp]
        for h in range(3):
            a(f"buffer_load_dwordx4 v[{8+12*sp+4*h}:{11+12*sp+4*h}], v5, s[16:19], {so} offen offset:{16*h}")
    a("s_waitcnt vmcnt(0)")
    for e in range(12):
        a(f"v_add_f32 v{8+e}, v{8+e}, v{20+e}")
        a(f"v_add_f32 v{8+e}, v{8+e}, v{32+e}")
    for e in range(0, 12, 2):
        a(f"v_cvt_pk_bf16_f32 v20, v{8+e}, v{9+e}")
        a(f"v_lshlrev_b32 v{8+e}, 16, v20")
        a(f"v_and_b32 v{9+e}, 0xffff0000, v20")
    a(f"""
    v_mul_u32_u24 v5, 768, v1
    v_add_u32 v5, v5, v2
    v_lshlrev_b32 v5, 2, v5
    s_mov_b32 s20, {WS_GATE}
    buffer_store_dwordx4 v[8:11], v5, s[16:19], s20 offen
    buffer_store_dwordx4 v[12:15], v5, s[16:19], s20 offen offset:16
    buffer_store_dwordx4 v[16:19], v5, s[16:19], s20 offen offset:32
    """)
    a("""
    K3_end:
    s_endpgm
    """)
    return a

def common_q_dma_setup(a, vq_even, vq_odd):
    a(f"""
    v_lshrrev_b32 v202, 3, v200                    ; row_in
    v_and_b32 v203, 7, v200                        ; slot
    v_lshrrev_b32 v204, 4, v200                    ; i>>4 (0..3)
    v_xor_b32 v205, v203, v204                     ; even j
    v_xor_b32 v206, 4, v205                        ; odd j
    v_mul_u32_u24 v202, 4608, v202
    v_lshl_add_u32 v{vq_even}, v205, 4, v202
    v_lshl_add_u32 v{vq_odd}, v206, 4, v202
    """)

def perm_row(a, dst, src, tmp):
    a(f"""
    v_and_b32 v{dst}, 3, v{src}
    v_bfe_u32 v{tmp}, v{src}, 2, 1
    v_lshl_add_u32 v{dst}, v{tmp}, 3, v{dst}
    v_bfe_u32 v{tmp}, v{src}, 3, 1
    v_lshl_add_u32 v{dst}, v{tmp}, 2, v{dst}
    v_bfe_u32 v{tmp}, v{src}, 4, 1
    v_lshl_add_u32 v{dst}, v{tmp}, 4, v{dst}
    """)

def pipeline(a, ot, issue, setbuf, reads, mfmas, nreads, first_stamp=True):
    a(f"s_waitcnt vmcnt({ot.need({('d',0)})})")
    a("s_barrier")
    a.st_()
    setbuf(0, 0)
    reads(0)
    NG = NSTG * 4
    iss = []
    for g in range(NG):
        st, s = g // 4, g % 4
        if g + 1 < NG:
            setbuf((g + 1) // 4, (g + 1) % 4)
            reads(g + 1)
            a(f"s_waitcnt lgkmcnt({nreads})")
        else:
            a("s_waitcnt lgkmcnt(0)")
        ms = mfmas(g)
        if s == 1 and st + 1 < NSTG:
            a(ms[0])
            a(f"s_waitcnt vmcnt({ot.need({('d',st+1)})})")
            a("s_barrier")
            if st in (0, 1, 2, 6, 10): a.st_()
            if st >= 1 and st + PRE < NSTG:
                iss = issue(st + PRE)
            ms = ms[1:]
        for m in ms:
            a(m)
            for l in iss[:4]: a(l)
            iss = iss[4:]
        if s == 3:
            for l in iss: a(l)
            iss = []

def gen_s(a, NTU, tag, isU):
    ot = OpTrack()
    VQE, VQO = 190, 191
    common_q_dma_setup(a, VQE, VQO)
    a(f"""
    s_mul_i32 s45, s43, 1056
    s_lshl_b32 s46, s42, 7
    s_add_u32 s46, s46, s45                        ; q row0
    s_mul_i32 s47, s41, {96 if isU else 128}
    s_add_u32 s47, s47, s45
    s_mul_i32 s48, s46, 4608
    s_mul_i32 s49, s47, 4608
    s_add_u32 s49, s49, 1536
    s_mul_i32 s50, s40, {0x20000000 if isU else 4*8*4608}
    s_add_u32 s48, s48, s50
    s_mul_i32 s50, s40, {NTU*8*4608}
    s_add_u32 s49, s49, s50
    s_lshl_b32 s51, s40, 12
    s_mul_i32 s52, s40, {NTU*1024}
    s_add_u32 s52, s52, 16384
    """)
    VKE, VKO = 192, 193
    if NTU % 2 == 0:
        a(f"v_mov_b32 v{VKE}, v{VQE}")
        a(f"v_mov_b32 v{VKO}, v{VQO}")
    else:
        a(f"""
        s_and_b32 s53, s40, 1
        s_cmp_eq_u32 s53, 1
        s_cselect_b64 s[54:55], -1, 0
        s_nop 1
        v_cndmask_b32 v{VKE}, v{VQE}, v{VQO}, s[54:55]
        v_cndmask_b32 v{VKO}, v{VQO}, v{VQE}, s[54:55]
        """)
    def issue(stage):
        bo = (stage % K3_NBUF) * K3_STG
        out = []
        for i in range(4):
            out += [f"s_add_u32 m0, s51, {bo + i*1024}",
                    f"s_add_u32 s56, s48, {stage*128 + i*8*4608}",
                    f"buffer_load_dwordx4 v{VQE if i % 2 == 0 else VQO}, s[16:19], s56 offen lds"]
        for i in range(NTU):
            out += [f"s_add_u32 m0, s52, {bo + i*1024}",
                    f"s_add_u32 s56, s49, {stage*128 + i*8*4608}",
                    f"buffer_load_dwordx4 v{VKE if i % 2 == 0 else VKO}, s[16:19], s56 offen lds"]
        ot.add(("d", stage), 4 + NTU)
        return out
    for st in range(2):
        for l in issue(st): a(l)
    VQA, VKA = 130, 134
    CQ, CK = 138, 142
    a(f"""
    v_and_b32 v202, 31, v200                       ; m / i
    v_lshrrev_b32 v203, 5, v200                    ; hh
    v_bfe_u32 v204, v202, 1, 3
    v_xor_b32 v204, v204, v203
    v_lshlrev_b32 v204, 4, v204
    v_lshl_add_u32 v204, v202, 7, v204
    s_lshl_b32 s53, s40, 12
    v_add_u32 v{VQA}, {"0" if isU else "s53"}, v204
    """)
    perm_row(a, 204, 202, 205)
    a(f"""
    v_bfe_u32 v205, v204, 1, 3
    v_xor_b32 v205, v205, v203
    v_lshlrev_b32 v205, 4, v205
    v_lshl_add_u32 v205, v204, 7, v205
    v_add_u32 v{VKA}, 16384, v205
    """)
    for s in range(1, 4):
        a(f"v_xor_b32 v{VQA+s}, {s << 5}, v{VQA}")
        a(f"v_xor_b32 v{VKA+s}, {s << 5}, v{VKA}")
    for st in range(2, PRE + 1):
        for l in issue(st): a(l)
    NF = NTU + 1
    def setbuf(stage, s):
        bo = (stage % K3_NBUF) * K3_STG
        a(f"v_add_u32 v{CQ}, {bo}, v{VQA+s}")
        a(f"v_add_u32 v{CK}, {bo}, v{VKA+s}")
    def reads(g):
        f = FR + 24 * (g & 1)
        a(f"ds_read_b128 v[{f}:{f+3}], v{CQ}")
        for T in range(NTU):
            a(f"ds_read_b128 v[{f+4+4*T}:{f+7+4*T}], v{CK} offset:{4096*T}")
    def mfmas(g):
        f = FR + 24 * (g & 1)
        out = []
        for T in range(NTU):
            c = "0" if g == 0 else f"v[{ACC+16*T}:{ACC+16*T+15}]"
            out.append(f"v_mfma_f32_32x32x16_bf16 v[{ACC+16*T}:{ACC+16*T+15}], v[{f+4+4*T}:{f+7+4*T}], v[{f}:{f+3}], {c}")
        return out
    pipeline(a, ot, issue, setbuf, reads, mfmas, NF)
    a.st_()
    CH = 24576
    PFA = 4 * CH
    NS = 2 * NTU
    NI_ = NS
    ou = OpTrack()
    def uissue(c):
        bo = (c % 4) * CH
        for i in range(NI_):
            a(f"s_add_u32 m0, s51, {bo + i*1024}")
            a(f"s_add_u32 s56, s48, {c*256 + i*4*4608}")
            a(f"buffer_load_dwordx4 v190, s[16:19], s56 offen lds")
        ou.add(("c", c), NI_)
    if isU:
      a(f"""
    s_barrier
    v_lshrrev_b32 v204, 4, v200
    v_and_b32 v205, 15, v200
    v_lshlrev_b32 v206, 2, v204
    v_xor_b32 v205, v205, v206
    v_mul_u32_u24 v204, 4608, v204
    v_lshl_add_u32 v190, v205, 4, v204
    s_mul_i32 s48, s47, 4608
    s_add_u32 s48, s48, 3072
    s_mul_i32 s50, s40, {NI_*4*4608}
    s_add_u32 s48, s48, s50
    s_mul_i32 s51, s40, {NI_*1024}
    """)
    if isU:
        uissue(0); uissue(1); uissue(2)
        gen_u(a, NTU, tag, ou, uissue, locals())
        return
    if tag == "S4":
        a("v_lshlrev_b32 v208, 6, v201")
        a("v_add_u32 v208, v208, v200")
        prefetch_code(a, "k4_kernel", "k4_kernel_END", 206, 208, "k3")
    if not isU:
        a("v_lshlrev_b32 v208, 6, v201")
        a("v_add_u32 v208, v208, v200")
        prefetch_wo(a, KA_WO_T, 209, 208, "k3" + tag)
    NE = 16 * NTU
    a("s_nop 15")
    a("s_nop 7")
    M = 150
    a(f"v_max3_f32 v{M}, v{ACC}, v{ACC+1}, v{ACC+2}")
    a(f"v_max3_f32 v{M+1}, v{ACC+3}, v{ACC+4}, v{ACC+5}")
    i = 6; k = 0
    while i + 1 < NE:
        a(f"v_max3_f32 v{M+k}, v{M+k}, v{ACC+i}, v{ACC+i+1}")
        i += 2; k ^= 1
    a(f"""
    v_max_f32 v{M}, v{M}, v{M+1}
    v_mov_b32 v{M+1}, v{M}
    s_nop 1
    v_permlane32_swap_b32 v{M}, v{M+1}
    s_nop 1
    v_max_f32 v{M}, v{M}, v{M+1}
    s_mov_b32 s53, {hex(f32bits(SCALE_L2E))}
    v_mul_f32 v{M}, s53, v{M}
    v_sub_f32 v{M+2}, 0, v{M}
    v_mov_b32 v{M+3}, s53
    """)
    for i in range(NE):
        a(f"v_fma_f32 v{ACC+i}, v{ACC+i}, v{M+3}, v{M+2}")
    for i in range(NE):
        a(f"v_exp_f32 v{ACC+i}, v{ACC+i}")
    a("s_nop 0")
    L = M + 4
    a(f"v_add_f32 v{L}, v{ACC}, v{ACC+1}")
    a(f"v_add_f32 v{L+1}, v{ACC+2}, v{ACC+3}")
    for i in range(4, NE, 2):
        a(f"v_add_f32 v{L}, v{L}, v{ACC+i}")
        a(f"v_add_f32 v{L+1}, v{L+1}, v{ACC+i+1}")
    a(f"""
    v_add_f32 v{L}, v{L}, v{L+1}
    v_mov_b32 v{L+1}, v{L}
    s_nop 1
    v_permlane32_swap_b32 v{L}, v{L+1}
    s_nop 1
    v_add_f32 v{L}, v{L}, v{L+1}
    v_mov_b32 v{M+1}, v{L}
    ; stats
    s_lshl_b32 s53, s42, 7
    s_lshl_b32 s54, s40, 5
    s_add_u32 s53, s53, s54
    s_add_u32 s55, s53, s45                        ; global
    v_add_u32 v204, s55, v202                      ; row
    v_lshlrev_b32 v206, 6, v204
    s_lshl_b32 s54, s41, 3
    """)
    PF = 84
    for T in range(NTU):
        for h in range(2):
            r = ACC + 16*T + 8*h
            o = PF + 4*(2*T + h)
            for d in range(4):
                a(f"v_cvt_pk_bf16_f32 v{o+d}, v{r+2*d}, v{r+2*d+1}")
    a(f"""
    v_mul_u32_u24 v205, {PP}, v204
    v_lshl_add_u32 v205, v203, 4, v205
    s_lshl_b32 s56, s41, 8
    """)
    for T in range(NTU):
        for h in range(2):
            o = PF + 4*(2*T + h)
            a(f"buffer_store_dwordx4 v[{o}:{o+3}], v205, s[20:23], s56 offen offset:{64*T + 32*h}")
    a(f"""
    v_cmp_gt_u32 vcc, 32, v200
    s_and_saveexec_b64 s[56:57], vcc
    buffer_store_dwordx2 v[{M}:{M+1}], v206, s[24:27], s54 offen
    s_mov_b64 exec, s[56:57]
    """)
    a.st_()
    a.st_.out(210, 16, 40) if False else None
    stamp_out(a)
    a("s_endpgm")

def stamp_out(a):
    st = a.st_
    if not st.on: return
    n0 = st.n
    srd(a, 32, 12, WS_QKV)
    st.out(210, 32, 40)
    st.n = n0

def gen_v(a):
    ot = OpTrack()
    VQE, VQO, VW = 190, 191, 192
    a.st_.n = 1
    a("s_waitcnt lgkmcnt(0)")
    a.st_()
    srd_off(a, 16, 12, WS_QKV, 2*1056*2304*2)
    a(f"""
    s_mov_b32 s20, s8
    s_mov_b32 s21, s9
    s_mov_b32 s22, {768*1536}
    s_mov_b32 s23, 0x00020000
    """)
    srd_off(a, 24, 12, WS_VT, 2*768*PP)
    common_q_dma_setup(a, VQE, VQO)
    a(f"""
    s_mul_i32 s46, s43, 1056
    s_add_u32 s47, s44, s46
    s_mul_i32 s48, s47, 4608
    s_add_u32 s48, s48, 3072
    s_lshl_b32 s51, s40, 12
    v_lshrrev_b32 v202, 4, v200
    v_and_b32 v203, 15, v200
    v_lshlrev_b32 v204, 2, v202
    v_xor_b32 v203, v203, v204
    v_mul_u32_u24 v202, 1536, v202
    v_lshl_add_u32 v{VW}, v203, 4, v202
    s_lshl_b32 s49, s45, 8
    s_mul_i32 s50, s40, {16*1536}
    s_add_u32 s49, s49, s50
    s_lshl_b32 s52, s40, 12
    s_add_u32 s52, s52, 16384
    """)
    def issue(stage):
        bo = (stage % K3_NBUF) * K3_STG
        out = []
        for i in range(4):
            out += [f"s_add_u32 m0, s51, {bo + i*1024}",
                    f"s_add_u32 s56, s48, {stage*128 + i*8*4608}",
                    f"buffer_load_dwordx4 v{VQE if i % 2 == 0 else VQO}, s[16:19], s56 offen lds"]
        for i in range(4):
            out += [f"s_add_u32 m0, s52, {bo + i*1024}",
                    f"s_add_u32 s56, s49, {stage*64*1536 + i*4*1536}",
                    f"buffer_load_dwordx4 v{VW}, s[20:23], s56 offen lds"]
        ot.add(("d", stage), 8)
        return out
    for st in range(2):
        for l in issue(st): a(l)
    VVA = 130; VWA = 134
    CV, CW = 138, 142
    a(f"""
    v_and_b32 v202, 31, v200
    v_lshrrev_b32 v203, 5, v200
    """)
    perm_row(a, 204, 202, 205)
    a(f"""
    v_bfe_u32 v205, v204, 1, 3
    v_xor_b32 v205, v205, v203
    v_lshlrev_b32 v205, 4, v205
    v_lshl_add_u32 v205, v204, 7, v205
    s_lshl_b32 s53, s40, 12
    v_add_u32 v{VVA}, s53, v205
    v_bfe_u32 v204, v200, 2, 2
    v_lshl_add_u32 v205, v203, 3, v204
    v_lshlrev_b32 v205, 8, v205
    v_lshl_add_u32 v205, v204, 6, v205
    v_bfe_u32 v206, v200, 4, 1
    v_lshl_add_u32 v205, v206, 5, v205
    v_and_b32 v206, 3, v200
    v_lshl_add_u32 v205, v206, 3, v205
    v_add_u32 v{VWA}, 16384, v205
    """)
    for s in range(1, 4):
        a(f"v_xor_b32 v{VVA+s}, {s << 5}, v{VVA}")
        a(f"v_xor_b32 v{VWA+s}, {s << 6}, v{VWA}")
    for st in range(2, PRE + 1):
        for l in issue(st): a(l)
    def setbuf(stage, s):
        bo = (stage % K3_NBUF) * K3_STG
        a(f"v_add_u32 v{CV}, {bo}, v{VVA+s}")
        if s == 0:
            for T in range(4):
                a(f"v_add_u32 v{CW+T}, {bo}, v{VWA+T}")
    def reads(g):
        s = g % 4
        f = FR + 24 * (g & 1)
        a(f"ds_read_b128 v[{f}:{f+3}], v{CV}")
        for T in range(4):
            a(f"ds_read_b64_tr_b16 v[{f+4+4*T}:{f+5+4*T}], v{CW+T} offset:{4096*s}")
            a(f"ds_read_b64_tr_b16 v[{f+6+4*T}:{f+7+4*T}], v{CW+T} offset:{4096*s+1024}")
    def mfmas(g):
        f = FR + 24 * (g & 1)
        out = []
        for T in range(4):
            c = "0" if g == 0 else f"v[{ACC+16*T}:{ACC+16*T+15}]"
            out.append(f"v_mfma_f32_32x32x16_bf16 v[{ACC+16*T}:{ACC+16*T+15}], v[{f}:{f+3}], v[{f+4+4*T}:{f+7+4*T}], {c}")
        return out
    pipeline(a, ot, issue, setbuf, reads, mfmas, 9)
    a.st_()
    a(f"""
    s_nop 15
    s_nop 7
    s_cmp_eq_u32 s42, 0
    s_cbranch_scc1 K3_end
    s_mul_i32 s54, s43, 768
    s_lshl_b32 s55, s45, 7
    s_add_u32 s54, s54, s55
    v_add_u32 v204, s54, v202
    v_mul_u32_u24 v205, {PP}, v204
    v_lshl_add_u32 v205, v203, 4, v205
    s_lshl_b32 s54, s44, 1
    """)
    for T in range(4):
        for h in range(2):
            r = ACC + 16*T + 8*h
            o = FR + 4 * ((2*T + h) % 8)
            a(f"""
            v_cvt_pk_bf16_f32 v{o}, v{r}, v{r+1}
            v_cvt_pk_bf16_f32 v{o+1}, v{r+2}, v{r+3}
            v_cvt_pk_bf16_f32 v{o+2}, v{r+4}, v{r+5}
            v_cvt_pk_bf16_f32 v{o+3}, v{r+6}, v{r+7}
            s_add_u32 s55, s54, {T*32*PP + 32*h}
            buffer_store_dwordx4 v[{o}:{o+3}], v205, s[24:27], s55 offen
            """)
    a.st_()
    stamp_out(a)
    a("s_endpgm")

def gen_u(a, NTU, tag, ou, uissue, L_):
    NE = 16 * NTU
    M = 150
    PF = 84
    CH = L_["CH"]; PFA = L_["PFA"]; NS = L_["NS"]; NI_ = L_["NI_"]
    a.label(f"K3_Usm{tag}")
    a("s_nop 15")
    a("s_nop 7")
    a(f"v_max3_f32 v{M}, v{ACC}, v{ACC+1}, v{ACC+2}")
    a(f"v_max3_f32 v{M+1}, v{ACC+3}, v{ACC+4}, v{ACC+5}")
    i = 6; k = 0
    while i + 1 < NE:
        a(f"v_max3_f32 v{M+k}, v{M+k}, v{ACC+i}, v{ACC+i+1}")
        i += 2; k ^= 1
    a(f"""
    v_max_f32 v{M}, v{M}, v{M+1}
    v_mov_b32 v{M+1}, v{M}
    s_nop 1
    v_permlane32_swap_b32 v{M}, v{M+1}
    s_nop 1
    v_max_f32 v{M}, v{M}, v{M+1}
    s_mov_b32 s53, {hex(f32bits(SCALE_L2E))}
    v_mul_f32 v{M}, s53, v{M}
    v_sub_f32 v{M+2}, 0, v{M}
    v_mov_b32 v{M+3}, s53
    v_lshlrev_b32 v204, 4, v200
    v_add_u32 v204, {PFA}, v204
    v_mov_b32 v{M+4}, 0
    """)
    L = M + 4
    def unit(T):
        for i in range(16):
            a(f"v_fma_f32 v{ACC+16*T+i}, v{ACC+16*T+i}, v{M+3}, v{M+2}")
        for i in range(16):
            a(f"v_exp_f32 v{ACC+16*T+i}, v{ACC+16*T+i}")
        a("s_nop 0")
        for i in range(16):
            a(f"v_add_f32 v{L}, v{L}, v{ACC+16*T+i}")
        for h in range(2):
            for d in range(4):
                a(f"v_cvt_pk_bf16_f32 v{PF+d}, v{ACC+16*T+8*h+2*d}, v{ACC+16*T+8*h+2*d+1}")
            a(f"ds_write_b128 v204, v[{PF}:{PF+3}] offset:{1024*(2*T+h)}")
            a("s_nop 1")
    for w in range(4):
        a(f"s_cmp_eq_u32 s40, {w}")
        a(f"s_cbranch_scc0 K3_Uw{w+1}{tag}")
        if w < NTU: unit(w)
        a(f"s_branch K3_Ul{tag}")
        a.label(f"K3_Uw{w+1}{tag}")
    a.label(f"K3_Ul{tag}")
    a(f"""
    v_lshlrev_b32 v205, 2, v200
    s_lshl_b32 s53, s40, 8
    s_add_u32 s53, s53, {PFA + 10240}
    v_add_u32 v206, s53, v205
    ds_write_b32 v206, v{L}
    """)
    a(f"""
    v_bfe_u32 v204, v200, 2, 2                     ; r'
    v_lshl_add_u32 v205, v203, 3, v204
    v_lshlrev_b32 v205, 8, v205
    v_xor_b32 v204, s40, v204
    v_lshl_add_u32 v205, v204, 6, v205
    v_bfe_u32 v206, v200, 4, 1
    v_lshl_add_u32 v205, v206, 5, v205
    v_and_b32 v206, 1, v200
    v_lshl_add_u32 v205, v206, 4, v205
    v_bfe_u32 v206, v200, 1, 1
    v_lshl_add_u32 v191, v206, 3, v205
    v_add_u32 v192, {CH}, v191
    v_add_u32 v193, {2*CH}, v191
    v_add_u32 v195, {3*CH}, v191
    s_mul_i32 s53, s43, 11
    s_add_u32 s53, s53, s41
    s_lshl_b32 s53, s53, 5
    v_add_u32 v204, s53, v202
    v_mul_u32_u24 v204, 1536, v204
    v_lshl_add_u32 v204, v203, 4, v204
    s_lshl_b32 s53, s40, 6
    v_add_u32 v194, s53, v204
    """)
    srd_off(a, 28, 12, WS_U, 2*11*32*1536)
    srd_off(a, 24, 12, WS_PST, 2*32*128)
    a(f"""
    s_waitcnt lgkmcnt(0)
    s_barrier
    v_lshlrev_b32 v204, 4, v200
    v_add_u32 v204, {PFA}, v204
    s_cmp_lg_u32 s40, 0
    s_cbranch_scc1 K3_Uns{tag}
    v_lshlrev_b32 v205, 2, v200
    v_add_u32 v206, {PFA + 10240}, v205
    ds_read_b32 v0, v206
    ds_read_b32 v1, v206 offset:256
    ds_read_b32 v2, v206 offset:512
    ds_read_b32 v3, v206 offset:768
    s_waitcnt lgkmcnt(0)
    v_add_f32 v0, v0, v1
    v_add_f32 v2, v2, v3
    v_add_f32 v0, v0, v2
    v_mov_b32 v1, v0
    s_nop 1
    v_permlane32_swap_b32 v0, v1
    s_nop 1
    v_add_f32 v{M+1}, v0, v1
    s_lshl_b32 s55, s43, 5
    v_add_u32 v206, s55, v202
    v_lshlrev_b32 v206, 7, v206
    s_lshl_b32 s54, s41, 3
    v_cmp_gt_u32 vcc, 32, v200
    s_and_saveexec_b64 s[56:57], vcc
    buffer_store_dwordx2 v[{M}:{M+1}], v206, s[24:27], s54 offen
    s_mov_b64 exec, s[56:57]
    K3_Uns{tag}:
    """)
    for i in range(NS):
        a(f"ds_read_b128 v[{PF+4*i}:{PF+4*i+3}], v204 offset:{1024*i}")
    VF = 0
    UA = 40
    def uepi(c):
        ua = UA + 16*(c & 1)
        out = []
        for h in range(2):
            o = 72 + 4*h
            for d in range(4):
                out.append(f"v_cvt_pk_bf16_f32 v{o+d}, v{ua+8*h+2*d}, v{ua+8*h+2*d+1}")
            out.append(f"buffer_store_dwordx4 v[{o}:{o+3}], v194, s[28:31], 0 offen offset:{256*c + 32*h}")
        ou.add(("s", c), 2)
        return out
    for c in range(6):
        a(f"s_waitcnt vmcnt({ou.need({('c',c)})})")
        a("s_barrier")
        va = [191, 192, 193, 195][c % 4]
        for s in range(NS):
            a(f"ds_read_b64_tr_b16 v[{VF+4*s}:{VF+4*s+1}], v{va} offset:{4096*s}")
            a(f"ds_read_b64_tr_b16 v[{VF+4*s+2}:{VF+4*s+3}], v{va} offset:{4096*s+1024}")
        if c + 3 < 6:
            uissue(c + 3)
        ua = UA + 16*(c & 1)
        ep = uepi(c - 1) if c >= 1 else []
        for s in range(NS):
            a(f"s_waitcnt lgkmcnt({min(15, 2*(NS-1-s))})")
            cc = "0" if s == 0 else f"v[{ua}:{ua+15}]"
            a(f"v_mfma_f32_32x32x16_bf16 v[{ua}:{ua+15}], v[{VF+4*s}:{VF+4*s+3}], v[{PF+4*s}:{PF+4*s+3}], {cc}")
            if s >= 2:
                for l in ep[:3]: a(l)
                ep = ep[3:]
        for l in ep: a(l)
    a("s_nop 15")
    a("s_nop 7")
    for l in uepi(5): a(l)
    stamp_out(a)
    a("s_endpgm")
```

```python
B, NI, NT_, D = 2, 1024, 32, 768
NTOK = NI + NT_
KA_XIMG, KA_XTXT, KA_C, KA_WQKV_I, KA_WQKV_T, KA_WO_I, KA_WO_T, KA_WMOD_I, KA_WMOD_T, KA_OUT, KA_DBG, KA_WS = [8*i for i in range(12)]
WS_MODP   = 0x0
WS_STATS  = 0x20000
WS_GATE   = 0x30000
WS_QKV    = 0x100000
WS_XN     = 0xC00000
WS_P      = 0x1000000
WS_PSTAT  = 0x1800000
WS_VT     = 0x1900000
WS_VT2    = 0x1d00000
WS_SIZE   = 268435456

class Asm:
    def __init__(self):
        self.lines = []
        self.uid = 0
    def __call__(self, s):
        for ln in s.strip("\n").split("\n"):
            self.lines.append("  " + ln.strip() if not ln.strip().endswith(":") else ln.strip())
    def label(self, name):
        self.lines.append(name + ":")
    def newlabel(self, p="L"):
        self.uid += 1
        return f"{p}_{self.uid}"
    def text(self):
        return "\n".join(self.lines) + "\n"

def srd(a, sreg, sptr, nbytes):
    a(f"s_mov_b32 s{sreg}, s{sptr}")
    a(f"s_mov_b32 s{sreg+1}, s{sptr+1}")
    a(f"s_mov_b32 s{sreg+2}, {nbytes}")
    a(f"s_mov_b32 s{sreg+3}, 0x00020000")

def kernel_header(name):
    return f""".globl {name}
.p2align 8
.type {name},@function
{name}:
"""

def kernel_desc(name, vgpr, sgpr=102, accum=None):
    if accum is None:
        accum = (vgpr + 3) // 4 * 4
    return f""".p2align 6
.amdhsa_kernel {name}
  .amdhsa_next_free_vgpr {vgpr}
  .amdhsa_next_free_sgpr {sgpr}
  .amdhsa_accum_offset {accum}
  .amdhsa_group_segment_fixed_size 0
  .amdhsa_kernarg_size 96
  .amdhsa_user_sgpr_count 2
  .amdhsa_user_sgpr_kernarg_segment_ptr 1
  .amdhsa_system_sgpr_workgroup_id_x 1
.end_amdhsa_kernel
"""

def wave_sum(a, v, tmp):
    a(f"s_nop 1")
    a(f"v_add_f32_dpp v{v}, v{v}, v{v} quad_perm:[1,0,3,2] row_mask:0xf bank_mask:0xf")
    a(f"s_nop 1")
    a(f"v_add_f32_dpp v{v}, v{v}, v{v} quad_perm:[2,3,0,1] row_mask:0xf bank_mask:0xf")
    a(f"s_nop 1")
    a(f"v_add_f32_dpp v{v}, v{v}, v{v} row_half_mirror row_mask:0xf bank_mask:0xf")
    a(f"s_nop 1")
    a(f"v_add_f32_dpp v{v}, v{v}, v{v} row_mirror row_mask:0xf bank_mask:0xf")
    a(f"v_mov_b32 v{tmp}, v{v}")
    a(f"s_nop 1")
    a(f"v_permlane16_swap_b32 v{v}, v{tmp}")
    a(f"s_nop 1")
    a(f"v_add_f32 v{v}, v{v}, v{tmp}")
    a(f"v_mov_b32 v{tmp}, v{v}")
    a(f"s_nop 1")
    a(f"v_permlane32_swap_b32 v{v}, v{tmp}")
    a(f"s_nop 1")
    a(f"v_add_f32 v{v}, v{v}, v{tmp}")

def srd_off(a, sreg, sptr, off, nbytes):
    a(f"s_add_u32 s{sreg}, s{sptr}, {off}")
    a(f"s_addc_u32 s{sreg+1}, s{sptr+1}, 0")
    a(f"s_mov_b32 s{sreg+2}, {nbytes}")
    a(f"s_mov_b32 s{sreg+3}, 0x00020000")
import struct
def f32bits(x):
    return struct.unpack('<I', struct.pack('<f', x))[0]

class Stamper:
    def __init__(self, a, on, base=0x40000): self.a, self.on, self.n, self.base = a, on, 0, base
    def __call__(self):
        if not self.on or self.n >= 14: return
        if self.n == 0:
            self.a("s_memrealtime s[94:95]")
        self.a(f"s_memtime s[{66+2*self.n}:{67+2*self.n}]"); self.n += 1
    def out(self, vt, srd_ws, swave):
        if not self.on: return
        a = self.a
        a("s_waitcnt vmcnt(0)")
        self()
        a("s_memrealtime s[96:97]")
        a("s_waitcnt lgkmcnt(0)")
        a("s_lshl_b32 s3, s2, 3")
        a(f"s_add_u32 s3, s3, s{swave}")
        a("s_lshl_b32 s3, s3, 6")
        a(f"s_add_u32 s3, s3, {self.base}")
        a(f"v_mov_b32 v{vt}, 0")
        for i in range(self.n):
            a(f"v_mov_b32 v{vt+1}, s{66+2*i}")
            a(f"buffer_store_dword v{vt+1}, v{vt}, s[{srd_ws}:{srd_ws+3}], s3 offen offset:{4*i}")
        a(f"v_mov_b32 v{vt+1}, s94")
        a(f"buffer_store_dword v{vt+1}, v{vt}, s[{srd_ws}:{srd_ws+3}], s3 offen offset:56")
        a(f"v_mov_b32 v{vt+1}, s96")
        a(f"buffer_store_dword v{vt+1}, v{vt}, s[{srd_ws}:{srd_ws+3}], s3 offen offset:60")
PP = 2176

def prefetch_code(a, start_label, end_label, vtmp, vtid, uniq, nwg=32):
    lab = f"PFC_{uniq}"
    a(f"s_cmp_ge_u32 s2, {nwg}")
    a(f"s_cbranch_scc1 {lab}_skip")
    a(f"s_getpc_b64 s[98:99]")
    a.label(f"{lab}_pc")
    a(f"s_add_u32 s98, s98, {start_label}-{lab}_pc")
    a(f"s_addc_u32 s99, s99, 0")
    a(f"v_lshlrev_b32 v{vtmp}, 7, v{vtid}")
    a(f"v_min_u32 v{vtmp}, {end_label}-{start_label}-4, v{vtmp}")
    a(f"global_load_dword v{vtmp+1}, v{vtmp}, s[98:99]")
    a(f"v_lshlrev_b32 v{vtmp}, 7, v{vtid}")
    a(f"v_add_u32 v{vtmp}, 32768, v{vtmp}")
    a(f"v_min_u32 v{vtmp}, {end_label}-{start_label}-4, v{vtmp}")
    a(f"global_load_dword v{vtmp+1}, v{vtmp}, s[98:99]")
    a.label(f"{lab}_skip")

def prefetch_wo(a, ka_off, vtmp, vtid, uniq):
    lab = f"PFW_{uniq}"
    a(f"""
    s_load_dwordx2 s[98:99], s[0:1], {ka_off}
    s_lshr_b32 s100, s2, 3
    s_cmp_ge_u32 s100, 18
    s_cbranch_scc1 {lab}
    s_lshl_b32 s100, s100, 8
    v_add_u32 v{vtmp}, s100, v{vtid}
    v_mul_u32_u24 v{vtmp+1}, 10923, v{vtmp}
    v_lshrrev_b32 v{vtmp+1}, 16, v{vtmp+1}
    v_mul_u32_u24 v{vtmp+2}, 6, v{vtmp+1}
    v_sub_u32 v{vtmp+2}, v{vtmp}, v{vtmp+2}
    v_mul_u32_u24 v{vtmp+1}, 1536, v{vtmp+1}
    v_lshl_add_u32 v{vtmp+1}, v{vtmp+2}, 7, v{vtmp+1}
    s_and_b32 s100, s2, 1
    s_mul_i32 s100, s100, 768
    v_add_u32 v{vtmp+1}, s100, v{vtmp+1}
    s_waitcnt lgkmcnt(0)
    global_load_dword v{vtmp+2}, v{vtmp+1}, s[98:99]
    {lab}:
    """)
```

```python
from common import *
import struct
def f32bits(x):
    return struct.unpack('<I', struct.pack('<f', x))[0]


PFC = True
PFW = False
PFT = True
K1_NMOD = 216
K1_NSTAT = 264
K1_GRID = K1_NMOD + K1_NSTAT + 32
K1_LDS = 12288

def gen_k1():
    a = Asm()
    a(f"""
    s_cmp_ge_u32 s2, {K1_GRID}
    s_cbranch_scc1 K1_end
    s_load_dwordx4 s[4:7], s[0:1], {KA_XIMG}
    s_load_dwordx2 s[8:9], s[0:1], {KA_C}
    s_load_dwordx4 s[12:15], s[0:1], {KA_WMOD_I}
    s_load_dwordx2 s[10:11], s[0:1], {KA_WS}
    v_and_b32 v1, 63, v0                          ; lane
    v_lshrrev_b32 v2, 6, v0                       ; wave
    """)
    a("s_waitcnt lgkmcnt(0)")
    srd(a, 16, 10, WS_SIZE)
    a(f"""
    s_cmp_ge_u32 s2, {K1_NMOD + K1_NSTAT}
    s_cbranch_scc0 K1_work
    s_load_dwordx2 s[40:41], s[0:1], {KA_OUT}
    v_lshlrev_b32 v90, 19, v0
    v_cmp_gt_u32 vcc, 80, v0
    s_and_saveexec_b64 s[42:43], vcc
    buffer_load_dword v91, v90, s[16:19], 0 offen
    s_mov_b64 exec, s[42:43]
    s_waitcnt lgkmcnt(0)
    v_cmp_gt_u32 vcc, 7, v0
    s_and_saveexec_b64 s[42:43], vcc
    global_load_dword v91, v90, s[40:41]
    s_mov_b64 exec, s[42:43]
    """)
    prefetch_code(a, "k2_kernel", "k2_kernel_END", 90, 0, "k1", nwg=100000)
    if PFW:
        a(f"""
        s_load_dwordx2 s[44:45], s[0:1], {KA_WQKV_I}
        s_sub_u32 s46, s2, {K1_NMOD + K1_NSTAT}
        s_lshr_b32 s46, s46, 3
        s_lshl_b32 s46, s46, 8
        v_add_u32 v80, s46, v0                         ; p
        s_and_b32 s47, s2, 1
        s_lshl_b32 s47, s47, 11
        s_waitcnt lgkmcnt(0)
        """)
        for n in range(15):
            a(f"""
            v_add_u32 v81, {1024*n}, v80
            v_mul_u32_u24 v82, 52429, v81
            v_lshrrev_b32 v82, 20, v82
            v_mul_u32_u24 v83, 20, v82
            v_sub_u32 v83, v81, v83
            v_mul_u32_u24 v82, 4608, v82
            v_lshl_add_u32 v82, v83, 7, v82
            v_add_u32 v82, s47, v82
            global_load_dword v84, v82, s[44:45]
            """)
    a("""
    s_endpgm
    K1_work:
    """)
    a(f"""
    s_cmp_ge_u32 s2, {K1_NMOD}
    s_cbranch_scc1 K1_stats
    s_mov_b32 s20, 0
    s_mov_b32 s21, s2
    s_cmp_ge_u32 s21, 72
    s_cbranch_scc0 K1_m1
    s_sub_u32 s21, s21, 72
    s_add_u32 s20, s20, 1
    s_cmp_ge_u32 s21, 72
    s_cbranch_scc0 K1_m1
    s_sub_u32 s21, s21, 72
    s_add_u32 s20, s20, 1
    K1_m1:
    s_cmp_ge_u32 s21, 36
    s_cselect_b32 s24, s14, s12
    s_cselect_b32 s25, s15, s13
    s_cselect_b32 s22, 36, 0
    s_sub_u32 s22, s21, s22
    s_mov_b32 s26, {768*9216}
    s_mov_b32 s27, 0x00020000
    """)
    srd(a, 28, 8, 2*768*2)
    a(f"""
    s_lshl_b32 s23, s20, 8
    v_add_u32 v3, s23, v0
    v_lshlrev_b32 v3, 1, v3
    buffer_load_ushort v4, v3, s[28:31], 0 offen
    buffer_load_ushort v5, v3, s[28:31], 0 offen offset:1536
    ; W loads
    v_and_b32 v6, 15, v1                          ; colq
    v_lshrrev_b32 v7, 4, v1                       ; rsub
    v_lshl_add_u32 v8, v2, 6, v7
    s_movk_i32 s32, 9216
    v_mul_lo_u32 v9, v8, s32
    v_lshl_add_u32 v9, v6, 3, v9                  ; + colq*8
    s_lshl_b32 s33, s22, 7
    v_add_u32 v9, s33, v9
    s_mul_i32 s34, s20, {256*9216}
    """)
    for p in range(16):
        a(f"buffer_load_dwordx2 v[{32+2*p}:{33+2*p}], v9, s[24:27], s34 offen")
        if p < 15:
            a(f"s_add_u32 s34, s34, {4*9216}")
    a(f"""
    s_waitcnt vmcnt(16)
    """)
    for v in (4, 5):
        a(f"""
        v_lshlrev_b32 v{v}, 16, v{v}
        v_mul_f32 v10, 0xbfb8aa3b, v{v}           ; -x*log2e
        v_exp_f32 v10, v10
        s_nop 0
        v_add_f32 v10, 1.0, v10
        v_rcp_f32 v10, v10
        s_nop 0
        v_mul_f32 v{v}, v{v}, v10
        """)
    a(f"""
    v_cvt_pk_bf16_f32 v10, v4, v5
    v_lshlrev_b32 v4, 16, v10
    v_and_b32 v5, 0xffff0000, v10
    v_lshlrev_b32 v11, 3, v0
    ds_write_b64 v11, v[4:5]
    s_waitcnt lgkmcnt(0)
    s_barrier
    v_lshlrev_b32 v11, 3, v8
    """)
    for p in range(16):
        a(f"ds_read_b64 v[{64+2*p}:{65+2*p}], v11 offset:{32*p}")
    for i in range(8):
        a(f"v_mov_b32 v{16+i}, 0")
    for p in range(16):
        a(f"s_waitcnt vmcnt({15-p}) lgkmcnt({15-p})")
        w0, w1 = 32+2*p, 33+2*p
        c0, c1 = 64+2*p, 65+2*p
        a(f"""
        v_lshlrev_b32 v12, 16, v{w0}
        v_and_b32 v13, 0xffff0000, v{w0}
        v_lshlrev_b32 v14, 16, v{w1}
        v_and_b32 v15, 0xffff0000, v{w1}
        v_fmac_f32 v16, v12, v{c0}
        v_fmac_f32 v17, v13, v{c0}
        v_fmac_f32 v18, v14, v{c0}
        v_fmac_f32 v19, v15, v{c0}
        v_fmac_f32 v20, v12, v{c1}
        v_fmac_f32 v21, v13, v{c1}
        v_fmac_f32 v22, v14, v{c1}
        v_fmac_f32 v23, v15, v{c1}
        """)
    a(f"""
    v_lshl_add_u32 v11, v2, 2, v7                 ; w*4+rsub
    v_lshlrev_b32 v11, 9, v11                     ; *512
    v_lshl_add_u32 v11, v6, 5, v11                ; + colq*32
    ds_write_b128 v11, v[16:19] offset:2048
    ds_write_b128 v11, v[20:23] offset:2064
    s_waitcnt lgkmcnt(0)
    s_barrier
    v_cmp_gt_u32 vcc, 128, v0
    s_and_saveexec_b64 s[36:37], vcc
    s_cbranch_execz K1_end
    v_lshlrev_b32 v11, 2, v0
    """)
    for p in range(16):
        a(f"ds_read_b32 v{32+p}, v11 offset:{2048+512*p}")
    a("s_waitcnt lgkmcnt(0)")
    for st in (8, 4, 2, 1):
        for i in range(st):
            a(f"v_add_f32 v{32+i}, v{32+i}, v{32+i+st}")
    a(f"""
    v_lshrrev_b32 v12, 3, v0                      ; colq
    v_and_b32 v13, 3, v0                          ; c
    v_bfe_u32 v14, v0, 2, 1                       ; b
    v_lshl_add_u32 v12, v12, 2, v13               ; colq*4+c
    s_lshl_b32 s33, s21, 6
    v_add_u32 v12, s33, v12                       ; col 0..4607
    s_movk_i32 s32, 4608
    v_mad_u32_u24 v12, v14, s32, v12              ; b*4608 + col
    s_mul_i32 s33, s20, {2*4608}
    v_add_u32 v12, s33, v12
    v_lshlrev_b32 v12, 2, v12
    buffer_store_dword v32, v12, s[16:19], 0 offen offset:{WS_MODP}
    s_endpgm
    K1_stats:
    s_sub_u32 s20, s2, {K1_NMOD}
    s_lshl_b32 s20, s20, 3
    s_cmp_ge_u32 s20, 2048
    s_cselect_b32 s24, s6, s4
    s_cselect_b32 s25, s7, s5
    s_mov_b32 s33, {2048*1536}
    s_cselect_b32 s26, {64*1536}, s33
    s_cselect_b32 s21, 2048, 0
    s_mov_b32 s27, 0x00020000
    s_sub_u32 s21, s20, s21
    v_lshl_add_u32 v3, v2, 1, s21                 ; row0 = s21 + 2*w
    s_movk_i32 s32, 1536
    v_mul_lo_u32 v4, v3, s32
    v_mul_u32_u24 v5, 24, v1
    v_add_u32 v4, v4, v5
    buffer_load_dwordx3 v[8:10], v4, s[24:27], 0 offen
    buffer_load_dwordx3 v[12:14], v4, s[24:27], 0 offen offset:12
    buffer_load_dwordx3 v[16:18], v4, s[24:27], 0 offen offset:1536
    buffer_load_dwordx3 v[20:22], v4, s[24:27], 0 offen offset:1548
    """)
    for r in range(2):
        src = [8+8*r, 9+8*r, 10+8*r, 12+8*r, 13+8*r, 14+8*r]
        f = 32 + 16*r
        a(f"s_waitcnt vmcnt({2-2*r})")
        for i, sv in enumerate(src):
            a(f"v_lshlrev_b32 v{f+2*i}, 16, v{sv}")
            a(f"v_and_b32 v{f+2*i+1}, 0xffff0000, v{sv}")
        sm = 24 + 2*r
        a(f"v_add_f32 v{sm}, v{f}, v{f+1}")
        for i in range(2, 12):
            a(f"v_add_f32 v{sm}, v{sm}, v{f+i}")
        wave_sum(a, sm, 28)
        a(f"v_mul_f32 v{sm}, {hex(f32bits(1.0/768))}, v{sm}")
        for i in range(12):
            a(f"v_sub_f32 v{f+i}, v{f+i}, v{sm}")
        sq = 25 + 2*r
        a(f"v_mul_f32 v{sq}, v{f}, v{f}")
        for i in range(1, 12):
            a(f"v_fmac_f32 v{sq}, v{f+i}, v{f+i}")
        wave_sum(a, sq, 28)
        a(f"""
        v_mov_b32 v29, {hex(f32bits(1e-5))}
        v_fmac_f32 v29, {hex(f32bits(1.0/768))}, v{sq}
        v_rsq_f32 v{sq}, v29
        s_nop 0
        v_mul_f32 v{sm}, v{sm}, v{sq}
        v_sub_f32 v{sm}, 0, v{sm}
        """)
    a(f"""
    v_mul_u32_u24 v28, 12, v1                     ; e0 = 12*lane
    v_lshlrev_b32 v29, 5, v2
    """)
    for r in range(2):
        f = 32 + 16*r
        rs = 25 + 2*r
        for p in range(3):
            for e in range(4):
                a(f"v_mul_f32 v{f+4*p+e}, v{f+4*p+e}, v{rs}")
            a(f"v_cvt_pk_bf16_f32 v{64+2*p}, v{f+4*p}, v{f+4*p+1}")
            a(f"v_cvt_pk_bf16_f32 v{65+2*p}, v{f+4*p+2}, v{f+4*p+3}")
            a(f"""
            v_add_u32 v30, {4*p}, v28
            v_lshrrev_b32 v31, 3, v30
            v_bfe_u32 v30, v30, 2, 1
            v_lshlrev_b32 v31, 7, v31
            v_lshl_add_u32 v31, v30, 3, v31
            v_add_u32 v31, v31, v29
            ds_write_b64 v31, v[{64+2*p}:{65+2*p}] offset:{16*r}
            """)
    a(f"""
    s_waitcnt lgkmcnt(0)
    s_barrier
    v_lshlrev_b32 v3, 4, v0
    ds_read_b128 v[8:11], v3
    ds_read_b128 v[12:15], v3 offset:4096
    ds_read_b128 v[16:19], v3 offset:8192
    s_lshr_b32 s22, s20, 5
    s_mul_i32 s22, s22, {48*1024}
    s_and_b32 s23, s20, 31
    s_lshl_b32 s23, s23, 4
    s_add_u32 s22, s22, s23
    s_add_u32 s22, s22, {WS_XN}
    v_lshrrev_b32 v4, 4, v0
    v_bfe_u32 v5, v0, 3, 1                        ; hh
    v_and_b32 v6, 7, v0                           ; row
    v_lshlrev_b32 v4, 10, v4
    v_lshl_add_u32 v4, v5, 9, v4
    v_lshl_add_u32 v4, v6, 4, v4
    s_waitcnt lgkmcnt(0)
    buffer_store_dwordx4 v[8:11], v4, s[16:19], s22 offen
    s_add_u32 s22, s22, {16*1024}
    buffer_store_dwordx4 v[12:15], v4, s[16:19], s22 offen
    s_add_u32 s22, s22, {16*1024}
    buffer_store_dwordx4 v[16:19], v4, s[16:19], s22 offen
    K1_end:
    s_endpgm
    """)
    return a
```

```python
from common import *
from k3 import OpTrack

K2_GRID = 256
K2_NBUF = 4
PRE = 3
XD = 4
K2_STG = 20480
K2_LDS_MOD = K2_NBUF * K2_STG
K2_LDS = K2_LDS_MOD + 12288
NSTG = 12
DBG = set()
K2_VGPR = 176
K2_AGPR = 160

def gen_k2():
    a = Asm()
    st_ = Stamper(a, 'stamp' in DBG)
    st_()
    ot = OpTrack()
    BF = 0
    XR = 40
    AN = 104
    TMP = 120
    SCH = 124
    VD = 156
    VX = 161
    VL = 162
    VM = 164
    VLANE = 165
    VT = 166
    VMSK = 175
    a(f"""
    s_cmp_ge_u32 s2, {K2_GRID}
    s_cbranch_scc1 K2_end
    s_load_dwordx4 s[8:11], s[0:1], {KA_WQKV_I}
    s_load_dwordx2 s[12:13], s[0:1], {KA_WS}
    v_and_b32 v{VLANE}, 63, v0
    v_lshrrev_b32 v{VT}, 6, v0
    v_mov_b32 v{VT+1}, v0
    s_nop 0
    v_readfirstlane_b32 s40, v{VT}
    s_and_b32 s3, s2, 7                            ; j
    s_lshr_b32 s14, s2, 3                          ; i
    s_lshr_b32 s15, s3, 1                          ; rowgroup
    s_and_b32 s3, s3, 1                            ; colgroup
    s_and_b32 s41, s40, 1                          ; rg2
    s_lshr_b32 s42, s40, 1                         ; kh
    s_lshr_b32 s43, s14, 2
    s_lshl_b32 s3, s3, 3
    s_add_u32 s43, s43, s3
    s_and_b32 s44, s14, 3
    s_lshl_b32 s15, s15, 2
    s_add_u32 s44, s44, s15
    s_mov_b32 s45, 0                               ; is_txt
    s_cmp_eq_u32 s43, 15
    s_cbranch_scc0 K2_dec
    s_mov_b32 s45, 1
    s_mov_b32 s43, s44
    s_cmp_eq_u32 s43, 15
    s_cbranch_scc1 K2_end
    K2_dec:
    s_mul_i32 s46, s43, 160
    s_cmp_ge_u32 s43, 4
    s_cselect_b32 s47, 32, 0
    s_sub_u32 s46, s46, s47
    s_cmp_ge_u32 s43, 9
    s_cselect_b32 s47, 32, 0
    s_sub_u32 s46, s46, s47
    s_cmp_ge_u32 s43, 14
    s_cselect_b32 s47, 32, 0
    s_sub_u32 s46, s46, s47                        ; C0 (elements)
    s_lshl_b32 s55, s46, 1                         ; C0*2 bytes
    s_mul_i32 s54, s40, 320                        ; 5*wave*64
    s_mul_i32 s56, s40, 5120
    """)
    for i in range(5):
        a(f"""
        v_add_u32 v{VT+2}, s54, v{VLANE}
        v_add_u32 v{VT+2}, {64*i}, v{VT+2}           ; idx
        v_mul_u32_u24 v{VT+3}, 3277, v{VT+2}
        v_lshrrev_b32 v{VT+3}, 16, v{VT+3}           ; row
        v_mul_u32_u24 v{VT+4}, 20, v{VT+3}
        v_sub_u32 v{VT+4}, v{VT+2}, v{VT+4}          ; slot
        v_mul_u32_u24 v{VT+3}, 4608, v{VT+3}
        v_lshl_add_u32 v{VT+3}, v{VT+4}, 4, v{VT+3}
        v_add_u32 v{VD+i}, s55, v{VT+3}
        """)
    a(f"""
    v_lshlrev_b32 v{VX}, 4, v{VLANE}
    v_mov_b32 v{VMSK}, 0xffff0000
    s_waitcnt lgkmcnt(0)
    """)
    st_()
    srd(a, 24, 12, WS_QKV)
    srd_off(a, 28, 12, WS_QKV, 2*1056*2304*2)
    a(f"""
    s_add_u32 s16, s12, {WS_XN}
    s_addc_u32 s17, s13, 0
    s_mov_b32 s18, {66*48*1024}
    s_mov_b32 s19, 0x00020000
    s_cmp_eq_u32 s45, 1
    s_cselect_b32 s20, s10, s8
    s_cselect_b32 s21, s11, s9
    s_mov_b32 s22, {768*4608}
    s_mov_b32 s23, 0x00020000
    s_cbranch_scc1 K2_txt
    s_lshl_b32 s48, s44, 2
    s_lshl_b32 s47, s41, 1
    s_add_u32 s48, s48, s47
    s_lshr_b32 s50, s44, 3                         ; batch
    s_add_u32 s51, s48, s42
    s_add_u32 s51, s51, s50
    s_lshl_b32 s51, s51, 5
    s_mov_b32 s52, 1                               ; valid
    s_mov_b32 s53, 0
    s_branch K2_dec2
    K2_txt:
    s_add_u32 s48, s41, 64
    s_mov_b32 s50, s41
    s_mul_i32 s51, s50, 1056
    s_add_u32 s51, s51, 1024
    s_cmp_eq_u32 s42, 0
    s_cselect_b32 s52, 1, 0
    s_movk_i32 s53, 2304
    K2_dec2:
    s_mul_i32 s63, s48, 48
    s_lshl_b32 s64, s42, 1
    s_add_u32 s63, s63, s64
    s_lshl_b32 s63, s63, 10
    """)
    def issue_x_l(stage):
        xr = XR + 16*(stage % XD)
        ot.add(("x", stage), 4)
        return [f"s_add_u32 s64, s63, {stage*4096}",
                f"s_add_u32 s65, s63, {stage*4096 + 48*1024}",
                f"buffer_load_dwordx4 v[{xr}:{xr+3}], v{VX}, s[16:19], s64 offen",
                f"buffer_load_dwordx4 v[{xr+4}:{xr+7}], v{VX}, s[16:19], s65 offen",
                f"buffer_load_dwordx4 v[{xr+8}:{xr+11}], v{VX}, s[16:19], s64 offen offset:1024",
                f"buffer_load_dwordx4 v[{xr+12}:{xr+15}], v{VX}, s[16:19], s65 offen offset:1024"]
    def issue_l(stage):
        bi = stage % K2_NBUF
        out = [f"s_mov_b32 s38, {stage*64*4608}"]
        for i in range(5):
            out.append(f"s_add_u32 m0, s56, {bi*K2_STG + i*1024}")
            out.append("s_nop 0")
            out.append(f"buffer_load_dwordx4 v{VD+i}, s[20:23], s38 offen lds")
        ot.add(("d", stage), 5)
        return out
    def emit(ls):
        for l in ls: a(l)
    emit(issue_l(0)); emit(issue_x_l(0))
    a(f"""
    v_lshrrev_b32 v{VT+2}, 7, v{VT+1}              ; b = t>>7
    v_and_b32 v{VT+3}, 127, v{VT+1}
    v_mul_u32_u24 v{VT+3}, 12, v{VT+3}             ; i = (t&127)*12
    v_mul_u32_u24 v{VT+4}, 4608, v{VT+2}
    v_add_u32 v{VT+4}, v{VT+4}, v{VT+3}
    v_add_u32 v{VT+4}, s53, v{VT+4}
    v_lshlrev_b32 v{VT+4}, 2, v{VT+4}
    s_mov_b32 s64, {2*4608*4}
    s_mov_b32 s65, {2*2*4608*4}
    """)
    MB = XR + 16
    MB = 120
    for sp in range(3):
        so = ["0", "s64", "s65"][sp]
        for h in range(3):
            r = MB + 12*sp + 4*h
            a(f"buffer_load_dwordx4 v[{r}:{r+3}], v{VT+4}, s[24:27], {so} offen offset:{16*h}")
            ot.add(("mod", 0))
    emit(issue_l(1)); emit(issue_x_l(1))
    a(f"""
    v_bfe_u32 v{VT+4}, v{VLANE}, 2, 2              ; r'
    v_lshrrev_b32 v{VT+5}, 5, v{VLANE}             ; hh
    v_lshl_add_u32 v{VT+4}, v{VT+5}, 3, v{VT+4}    ; hh*8 + r'
    s_lshl_b32 s64, s42, 5
    v_add_u32 v{VT+4}, s64, v{VT+4}                ; + kh*32
    v_mul_u32_u24 v{VL}, 320, v{VT+4}
    v_bfe_u32 v{VT+4}, v{VLANE}, 4, 1
    v_lshl_add_u32 v{VL}, v{VT+4}, 5, v{VL}
    v_and_b32 v{VT+4}, 3, v{VLANE}
    v_lshl_add_u32 v{VL}, v{VT+4}, 3, v{VL}
    v_add_u32 v{VL+1}, {2*K2_STG}, v{VL}
    s_mul_i32 s64, s50, 6144
    s_lshl_b32 s65, s42, 7
    s_add_u32 s64, s64, s65
    s_add_u32 s64, s64, {K2_LDS_MOD}
    v_lshlrev_b32 v{VM}, 5, v{VT+5}
    v_add_u32 v{VM}, s64, v{VM}
    """)
    st_()
    a(f"s_waitcnt vmcnt({ot.need({('mod',0)})})")
    st_()
    for e in range(12):
        a(f"v_add_f32 v{MB+e}, v{MB+e}, v{MB+12+e}")
        a(f"v_add_f32 v{MB+e}, v{MB+e}, v{MB+24+e}")
    for e in range(0, 12, 2):
        a(f"v_cvt_pk_bf16_f32 v{MB+12}, v{MB+e}, v{MB+e+1}")
        a(f"v_lshlrev_b32 v{MB+e}, 16, v{MB+12}")
        a(f"v_and_b32 v{MB+e+1}, 0xffff0000, v{MB+12}")
    a(f"""
    s_and_b32 s64, s40, 1
    s_cmp_eq_u32 s64, 0
    s_cbranch_scc1 K2_nosc
    """)
    for e in range(0, 12, 2):
        a(f"v_add_f32 v{MB+e}, 1.0, v{MB+e}")
        a(f"v_add_f32 v{MB+e+1}, 1.0, v{MB+e+1}")
        a(f"v_cvt_pk_bf16_f32 v{MB+12}, v{MB+e}, v{MB+e+1}")
        a(f"v_lshlrev_b32 v{MB+e}, 16, v{MB+12}")
        a(f"v_and_b32 v{MB+e+1}, 0xffff0000, v{MB+12}")
    a.label("K2_nosc")
    a(f"""
    v_mul_u32_u24 v{VT+4}, 1536, v{VT+2}
    v_add_u32 v{VT+4}, v{VT+4}, v{VT+3}
    v_lshlrev_b32 v{VT+4}, 2, v{VT+4}
    v_add_u32 v{VT+4}, {K2_LDS_MOD}, v{VT+4}
    ds_write_b128 v{VT+4}, v[{MB}:{MB+3}]
    ds_write_b128 v{VT+4}, v[{MB+4}:{MB+7}] offset:16
    ds_write_b128 v{VT+4}, v[{MB+8}:{MB+11}] offset:32
    """)
    for st in range(2, PRE):
        emit(issue_l(st)); emit(issue_x_l(st))
    def modreads(stage, sp):
        base = (64*stage + 16*sp)*4
        r = SCH + 16*sp
        return [f"ds_read_b128 v[{r}:{r+3}], v{VM} offset:{base}",
                f"ds_read_b128 v[{r+4}:{r+7}], v{VM} offset:{base+16}",
                f"ds_read_b128 v[{r+8}:{r+11}], v{VM} offset:{base+3072}",
                f"ds_read_b128 v[{r+12}:{r+15}], v{VM} offset:{base+3072+16}"]
    def trreads(stage, sp):
        bi = stage % K2_NBUF
        out = []
        for T in range(5):
            r = BF + 20*sp + 4*T
            off = (bi % 2)*K2_STG + (16*sp)*320 + 64*T
            out.append(f"ds_read_b64_tr_b16 v[{r}:{r+1}], v{VL+bi//2} offset:{off}")
            out.append(f"ds_read_b64_tr_b16 v[{r+2}:{r+3}], v{VL+bi//2} offset:{off+4*320}")
        return out
    def normalize(stage, sp):
        r = SCH + 16*sp
        out = []
        for u in range(2):
            xr = XR + 16*(stage % XD) + 8*sp + 4*u
            for d in range(4):
                t0, t1 = TMP + 2*(d & 1), TMP + 2*(d & 1) + 1
                if 'pk' in DBG:
                    out += [f"v_lshlrev_b32 v{t0}, 16, v{xr+d}",
                            f"v_and_b32 v{t1}, v{VMSK}, v{xr+d}",
                            f"v_pk_fma_f32 v[{t0}:{t1}], v[{t0}:{t1}], v[{r+8+2*d}:{r+8+2*d+1}], v[{r+2*d}:{r+2*d+1}]",
                            f"v_cvt_pk_bf16_f32 v{AN+8*sp+4*u+d}, v{t0}, v{t1}"]
                elif u == 1:
                    out += [f"v_lshlrev_b32 v{t0}, 16, v{xr+d}",
                            f"v_and_b32 v{t1}, v{VMSK}, v{xr+d}",
                            f"v_fmac_f32 v{r+2*d}, v{t0}, v{r+8+2*d}",
                            f"v_fmac_f32 v{r+2*d+1}, v{t1}, v{r+8+2*d+1}",
                            f"v_cvt_pk_bf16_f32 v{AN+8*sp+4*u+d}, v{r+2*d}, v{r+2*d+1}"]
                else:
                    out += [f"v_lshlrev_b32 v{t0}, 16, v{xr+d}",
                            f"v_and_b32 v{t1}, v{VMSK}, v{xr+d}",
                            f"v_fma_f32 v{t0}, v{t0}, v{r+8+2*d}, v{r+2*d}",
                            f"v_fma_f32 v{t1}, v{t1}, v{r+8+2*d+1}, v{r+2*d+1}",
                            f"v_cvt_pk_bf16_f32 v{AN+8*sp+4*u+d}, v{t0}, v{t1}"]
        return out
    def mfmas(sp, first):
        out = []
        for u in range(2):
            for T in range(5):
                ac = 80*u + 16*T
                out.append(f"v_mfma_f32_32x32x16_bf16 a[{ac}:{ac+15}], v[{BF+20*sp+4*T}:{BF+20*sp+4*T+3}], v[{AN+8*sp+4*u}:{AN+8*sp+4*u+3}], " + ("0" if first else f"a[{ac}:{ac+15}]"))
        return out
    def weave(ms, fs):
        n = len(ms)
        k = 0
        for i, m in enumerate(ms):
            a(m)
            hi = (len(fs) * (i + 1)) // n
            emit(fs[k:hi]); k = hi
    a("s_waitcnt lgkmcnt(0)")
    a(f"s_waitcnt vmcnt({ot.need({('d',0),('x',0)})})")
    a("s_barrier")
    st_()
    emit(modreads(0, 0)); emit(trreads(0, 0)); emit(modreads(0, 1))
    a("s_waitcnt lgkmcnt(14)")
    emit(normalize(0, 0))
    emit(trreads(0, 1))
    for stage in range(NSTG):
        a(f"; ---- stage {stage}")
        m0 = mfmas(0, stage == 0); m1 = mfmas(1, False)
        a("s_waitcnt lgkmcnt(10)")
        nxt = stage + 1 < NSTG
        f0 = []
        if nxt:
            f0 += [f"s_waitcnt vmcnt({ot.need({('d',stage+1),('x',stage+1)})})", "s_barrier"]
        n1 = normalize(stage, 1)
        iss = []
        if stage + PRE < NSTG:
            iss = issue_l(stage + PRE) + issue_x_l(stage + PRE)
        mix = []
        tot = len(n1) + len(iss)
        i1 = i2 = 0
        for t in range(tot):
            if i2 * len(n1) <= i1 * len(iss) and i2 < len(iss) or i1 >= len(n1):
                mix.append(iss[i2]); i2 += 1
            else:
                mix.append(n1[i1]); i1 += 1
        weave(m0, f0 + mix)
        if stage in (1, 2, 3, 7, 11): st_()
        if nxt:
            n0 = normalize(stage+1, 0)
            f1 = modreads(stage+1, 0) + trreads(stage+1, 0) + ["s_waitcnt lgkmcnt(10)"] + n0 + modreads(stage+1, 1)
            a("s_waitcnt lgkmcnt(0)")
            weave(m1, f1)
            emit(trreads(stage+1, 1))
        else:
            a("s_waitcnt lgkmcnt(0)")
            emit(m1)
    a(f"""
    s_nop 15
    s_nop 7
    s_barrier
    """)
    st_()
    prefetch_code(a, "k3_kernel", "k3_kernel_END", VT+6, VT+1, "k2")
    prefetch_wo(a, KA_WO_I, VT+6, VT+1, "k2")
    a(f"""
    v_lshlrev_b32 v{VT+2}, 4, v{VLANE}
    s_mul_i32 s62, s40, 20480
    v_add_u32 v{VT+3}, s62, v{VT+2}
    s_xor_b32 s63, s40, 2
    s_mul_i32 s63, s63, 20480
    v_add_u32 v{VT+2}, s63, v{VT+2}
    s_cmp_eq_u32 s42, 0
    s_cbranch_scc0 K2_ep1
    """)
    for kh in range(2):
        if kh == 1: a.label("K2_ep1")
        send = 80*(1-kh); keep = 80*kh
        for i in range(20):
            a(f"ds_write_b128 v{VT+3}, a[{send+4*i}:{send+4*i+3}] offset:{1024*i}")
        a("s_waitcnt lgkmcnt(0)")
        a("s_barrier")
        for i in range(20):
            a(f"ds_read_b128 v[{4*i}:{4*i+3}], v{VT+2} offset:{1024*i}")
        lab = a.newlabel("K2_skip")
        a(f"""
        v_and_b32 v{VT+4}, 31, v{VLANE}
        v_add_u32 v{VT+4}, s51, v{VT+4}
        s_movk_i32 s62, 4608
        v_mul_lo_u32 v{VT+4}, v{VT+4}, s62
        v_lshrrev_b32 v{VT+5}, 5, v{VLANE}
        v_lshl_add_u32 v{VT+4}, v{VT+5}, 4, v{VT+4}
        s_cmp_eq_u32 s52, 0
        s_cbranch_scc1 {lab}
        """)
        for p in range(10):
            r = 8*p
            o = 96 + 4*(p % 4)
            a(f"s_waitcnt lgkmcnt({min(15, 18-2*p)})")
            for i in range(8):
                a(f"v_accvgpr_read_b32 v{112+i}, a{keep+8*p+i}")
            for i in range(8):
                a(f"v_add_f32 v{r+i}, v{r+i}, v{112+i}")
            a(f"""
            v_cvt_pk_bf16_f32 v{o}, v{r}, v{r+1}
            v_cvt_pk_bf16_f32 v{o+1}, v{r+2}, v{r+3}
            v_cvt_pk_bf16_f32 v{o+2}, v{r+4}, v{r+5}
            v_cvt_pk_bf16_f32 v{o+3}, v{r+6}, v{r+7}
            s_nop 1
            v_permlane32_swap_b32 v{o}, v{o+2}
            v_permlane32_swap_b32 v{o+1}, v{o+3}
            buffer_store_dwordx4 v[{o}:{o+3}], v{VT+4}, s[28:31], s55 offen offset:{32*p}
            """)
        a.label(lab)
        if kh == 0: a("s_branch K2_done")
    a.label("K2_done")
    st_()
    st_.out(VT, 24, 40)
    a("""
    K2_end:
    s_endpgm
    """)
    return a
```

```python
from common import *
import struct
def f32bits(x):
    return struct.unpack('<I', struct.pack('<f', x))[0]


PFC = True
PFW = False
PFW2 = False
PFT = True
K1_NMOD = 216
K1_NSTAT = 264
K1_GRID = K1_NMOD + K1_NSTAT
K1_LDS = 12288


def touch_w(a, v):
    a(f"""
    s_lshr_b32 s46, s2, 3
    s_lshl_b32 s46, s46, 8
    v_add_u32 v{v}, s46, v0
    v_mul_u32_u24 v{v+1}, 52429, v{v}
    v_lshrrev_b32 v{v+1}, 20, v{v+1}
    v_mul_u32_u24 v{v+2}, 20, v{v+1}
    v_sub_u32 v{v+2}, v{v}, v{v+2}
    v_mul_u32_u24 v{v+1}, 4608, v{v+1}
    v_lshl_add_u32 v{v+1}, v{v+2}, 7, v{v+1}
    s_and_b32 s47, s2, 1
    s_lshl_b32 s47, s47, 11
    v_add_u32 v{v+1}, s47, v{v+1}
    global_load_dword v{v+2}, v{v+1}, s[44:45]
    """)

def gen_k1():
    a = Asm()
    a(f"""
    s_cmp_ge_u32 s2, {K1_GRID}
    s_cbranch_scc1 K1_end
    s_load_dwordx4 s[4:7], s[0:1], {KA_XIMG}
    s_load_dwordx2 s[8:9], s[0:1], {KA_C}
    s_load_dwordx4 s[12:15], s[0:1], {KA_WMOD_I}
    s_load_dwordx2 s[10:11], s[0:1], {KA_WS}
    s_load_dwordx2 s[44:45], s[0:1], {KA_WQKV_I}
    v_and_b32 v1, 63, v0                          ; lane
    v_lshrrev_b32 v2, 6, v0                       ; wave
    """)
    a("s_waitcnt lgkmcnt(0)")
    srd(a, 16, 10, WS_SIZE)
    a(f"""
    s_cmp_ge_u32 s2, {K1_NMOD}
    s_cbranch_scc1 K1_stats
    s_mov_b32 s20, 0
    s_mov_b32 s21, s2
    s_cmp_ge_u32 s21, 72
    s_cbranch_scc0 K1_m1
    s_sub_u32 s21, s21, 72
    s_add_u32 s20, s20, 1
    s_cmp_ge_u32 s21, 72
    s_cbranch_scc0 K1_m1
    s_sub_u32 s21, s21, 72
    s_add_u32 s20, s20, 1
    K1_m1:
    s_cmp_ge_u32 s21, 36
    s_cselect_b32 s24, s14, s12
    s_cselect_b32 s25, s15, s13
    s_cselect_b32 s22, 36, 0
    s_sub_u32 s22, s21, s22
    s_mov_b32 s26, {768*9216}
    s_mov_b32 s27, 0x00020000
    """)
    srd(a, 28, 8, 2*768*2)
    a(f"""
    s_lshl_b32 s23, s20, 8
    v_add_u32 v3, s23, v0
    v_lshlrev_b32 v3, 1, v3
    buffer_load_ushort v4, v3, s[28:31], 0 offen
    buffer_load_ushort v5, v3, s[28:31], 0 offen offset:1536
    ; W loads
    v_and_b32 v6, 15, v1                          ; colq
    v_lshrrev_b32 v7, 4, v1                       ; rsub
    v_lshl_add_u32 v8, v2, 6, v7
    s_movk_i32 s32, 9216
    v_mul_lo_u32 v9, v8, s32
    v_lshl_add_u32 v9, v6, 3, v9                  ; + colq*8
    s_lshl_b32 s33, s22, 7
    v_add_u32 v9, s33, v9
    s_mul_i32 s34, s20, {256*9216}
    """)
    for p in range(16):
        a(f"buffer_load_dwordx2 v[{32+2*p}:{33+2*p}], v9, s[24:27], s34 offen")
        if p < 15:
            a(f"s_add_u32 s34, s34, {4*9216}")
    if PFW2: touch_w(a, 96)
    X = 1 if PFW2 else 0
    a(f"""
    s_waitcnt vmcnt({16+X})
    """)
    for v in (4, 5):
        a(f"""
        v_lshlrev_b32 v{v}, 16, v{v}
        v_mul_f32 v10, 0xbfb8aa3b, v{v}           ; -x*log2e
        v_exp_f32 v10, v10
        s_nop 0
        v_add_f32 v10, 1.0, v10
        v_rcp_f32 v10, v10
        s_nop 0
        v_mul_f32 v{v}, v{v}, v10
        """)
    a(f"""
    v_cvt_pk_bf16_f32 v10, v4, v5
    v_lshlrev_b32 v4, 16, v10
    v_and_b32 v5, 0xffff0000, v10
    v_lshlrev_b32 v11, 3, v0
    ds_write_b64 v11, v[4:5]
    s_waitcnt lgkmcnt(0)
    s_barrier
    v_lshlrev_b32 v11, 3, v8
    """)
    for p in range(16):
        a(f"ds_read_b64 v[{64+2*p}:{65+2*p}], v11 offset:{32*p}")
    for i in range(8):
        a(f"v_mov_b32 v{16+i}, 0")
    for p in range(16):
        a(f"s_waitcnt vmcnt({15-p+X}) lgkmcnt({15-p})")
        w0, w1 = 32+2*p, 33+2*p
        c0, c1 = 64+2*p, 65+2*p
        a(f"""
        v_lshlrev_b32 v12, 16, v{w0}
        v_and_b32 v13, 0xffff0000, v{w0}
        v_lshlrev_b32 v14, 16, v{w1}
        v_and_b32 v15, 0xffff0000, v{w1}
        v_fmac_f32 v16, v12, v{c0}
        v_fmac_f32 v17, v13, v{c0}
        v_fmac_f32 v18, v14, v{c0}
        v_fmac_f32 v19, v15, v{c0}
        v_fmac_f32 v20, v12, v{c1}
        v_fmac_f32 v21, v13, v{c1}
        v_fmac_f32 v22, v14, v{c1}
        v_fmac_f32 v23, v15, v{c1}
        """)
    a(f"""
    v_lshl_add_u32 v11, v2, 2, v7                 ; w*4+rsub
    v_lshlrev_b32 v11, 9, v11                     ; *512
    v_lshl_add_u32 v11, v6, 5, v11                ; + colq*32
    ds_write_b128 v11, v[16:19] offset:2048
    ds_write_b128 v11, v[20:23] offset:2064
    s_waitcnt lgkmcnt(0)
    s_barrier
    v_cmp_gt_u32 vcc, 128, v0
    s_and_saveexec_b64 s[36:37], vcc
    s_cbranch_execz K1_end
    v_lshlrev_b32 v11, 2, v0
    """)
    for p in range(16):
        a(f"ds_read_b32 v{32+p}, v11 offset:{2048+512*p}")
    a("s_waitcnt lgkmcnt(0)")
    for st in (8, 4, 2, 1):
        for i in range(st):
            a(f"v_add_f32 v{32+i}, v{32+i}, v{32+i+st}")
    a(f"""
    v_lshrrev_b32 v12, 3, v0                      ; colq
    v_and_b32 v13, 3, v0                          ; c
    v_bfe_u32 v14, v0, 2, 1                       ; b
    v_lshl_add_u32 v12, v12, 2, v13               ; colq*4+c
    s_lshl_b32 s33, s21, 6
    v_add_u32 v12, s33, v12                       ; col 0..4607
    s_movk_i32 s32, 4608
    v_mad_u32_u24 v12, v14, s32, v12              ; b*4608 + col
    s_mul_i32 s33, s20, {2*4608}
    v_add_u32 v12, s33, v12
    v_lshlrev_b32 v12, 2, v12
    buffer_store_dword v32, v12, s[16:19], 0 offen offset:{WS_MODP}
    s_endpgm
    K1_stats:
    s_sub_u32 s20, s2, {K1_NMOD}
    s_lshl_b32 s20, s20, 3
    s_cmp_ge_u32 s20, 2048
    s_cselect_b32 s24, s6, s4
    s_cselect_b32 s25, s7, s5
    s_mov_b32 s33, {2048*1536}
    s_cselect_b32 s26, {64*1536}, s33
    s_cselect_b32 s21, 2048, 0
    s_mov_b32 s27, 0x00020000
    s_sub_u32 s21, s20, s21
    v_lshl_add_u32 v3, v2, 1, s21                 ; row0 = s21 + 2*w
    s_movk_i32 s32, 1536
    v_mul_lo_u32 v4, v3, s32
    v_mul_u32_u24 v5, 24, v1
    v_add_u32 v4, v4, v5
    buffer_load_dwordx3 v[8:10], v4, s[24:27], 0 offen
    buffer_load_dwordx3 v[12:14], v4, s[24:27], 0 offen offset:12
    buffer_load_dwordx3 v[16:18], v4, s[24:27], 0 offen offset:1536
    buffer_load_dwordx3 v[20:22], v4, s[24:27], 0 offen offset:1548
    """)
    if PFW2: touch_w(a, 96)
    for r in range(2):
        src = [8+8*r, 9+8*r, 10+8*r, 12+8*r, 13+8*r, 14+8*r]
        f = 32 + 16*r
        a(f"s_waitcnt vmcnt({2-2*r+X})")
        for i, sv in enumerate(src):
            a(f"v_lshlrev_b32 v{f+2*i}, 16, v{sv}")
            a(f"v_and_b32 v{f+2*i+1}, 0xffff0000, v{sv}")
        sm = 24 + 2*r
        a(f"v_add_f32 v{sm}, v{f}, v{f+1}")
        for i in range(2, 12):
            a(f"v_add_f32 v{sm}, v{sm}, v{f+i}")
        wave_sum(a, sm, 28)
        a(f"v_mul_f32 v{sm}, {hex(f32bits(1.0/768))}, v{sm}")
        for i in range(12):
            a(f"v_sub_f32 v{f+i}, v{f+i}, v{sm}")
        sq = 25 + 2*r
        a(f"v_mul_f32 v{sq}, v{f}, v{f}")
        for i in range(1, 12):
            a(f"v_fmac_f32 v{sq}, v{f+i}, v{f+i}")
        wave_sum(a, sq, 28)
        a(f"""
        v_mov_b32 v29, {hex(f32bits(1e-5))}
        v_fmac_f32 v29, {hex(f32bits(1.0/768))}, v{sq}
        v_rsq_f32 v{sq}, v29
        s_nop 0
        v_mul_f32 v{sm}, v{sm}, v{sq}
        v_sub_f32 v{sm}, 0, v{sm}
        """)
    a(f"""
    v_mul_u32_u24 v28, 12, v1                     ; e0 = 12*lane
    v_lshlrev_b32 v29, 5, v2
    """)
    for r in range(2):
        f = 32 + 16*r
        rs = 25 + 2*r
        for p in range(3):
            for e in range(4):
                a(f"v_mul_f32 v{f+4*p+e}, v{f+4*p+e}, v{rs}")
            a(f"v_cvt_pk_bf16_f32 v{64+2*p}, v{f+4*p}, v{f+4*p+1}")
            a(f"v_cvt_pk_bf16_f32 v{65+2*p}, v{f+4*p+2}, v{f+4*p+3}")
            a(f"""
            v_add_u32 v30, {4*p}, v28
            v_lshrrev_b32 v31, 3, v30
            v_bfe_u32 v30, v30, 2, 1
            v_lshlrev_b32 v31, 7, v31
            v_lshl_add_u32 v31, v30, 3, v31
            v_add_u32 v31, v31, v29
            ds_write_b64 v31, v[{64+2*p}:{65+2*p}] offset:{16*r}
            """)
    a(f"""
    s_waitcnt lgkmcnt(0)
    s_barrier
    v_lshlrev_b32 v3, 4, v0
    ds_read_b128 v[8:11], v3
    ds_read_b128 v[12:15], v3 offset:4096
    ds_read_b128 v[16:19], v3 offset:8192
    s_lshr_b32 s22, s20, 5
    s_mul_i32 s22, s22, {48*1024}
    s_and_b32 s23, s20, 31
    s_lshl_b32 s23, s23, 4
    s_add_u32 s22, s22, s23
    s_add_u32 s22, s22, {WS_XN}
    v_lshrrev_b32 v4, 4, v0
    v_bfe_u32 v5, v0, 3, 1                        ; hh
    v_and_b32 v6, 7, v0                           ; row
    v_lshlrev_b32 v4, 10, v4
    v_lshl_add_u32 v4, v5, 9, v4
    v_lshl_add_u32 v4, v6, 4, v4
    s_waitcnt lgkmcnt(0)
    buffer_store_dwordx4 v[8:11], v4, s[16:19], s22 offen
    s_add_u32 s22, s22, {16*1024}
    buffer_store_dwordx4 v[12:15], v4, s[16:19], s22 offen
    s_add_u32 s22, s22, {16*1024}
    buffer_store_dwordx4 v[16:19], v4, s[16:19], s22 offen
    K1_end:
    s_endpgm
    """)
    return a
```
